```python
import torch

def _softmax(x, axis=-1):
    return torch.softmax(x, dim=axis)

def _gelu(x):
    return torch.nn.functional.gelu(x, approximate='tanh')

def _silu(x):
    return torch.nn.functional.silu(x)

def _sigmoid(x):
    return torch.sigmoid(x)

def _layernorm(x, axis=-1, eps=1e-05):
    m = x.mean(dim=axis, keepdim=True)
    v = x.var(dim=axis, keepdim=True, unbiased=False)
    return (x - m) / torch.sqrt(v + eps)

def _scatter_add(tgt, idx, src, axis=0):
    return tgt.clone().index_add_(axis, idx, src)

def _segment_sum(src, seg, n):
    out = torch.zeros((n,) + src.shape[1:], dtype=src.dtype)
    return out.index_add_(0, seg, src)

def _pad(x, pw):
    flat = tuple((v for pair in reversed(pw) for v in pair))
    return torch.nn.functional.pad(x, flat)
kernel_name = 'adaLN_cond__mha_block_cached__glu_gated_reglu__prompt'

def setup_inputs():

    _w = lambda a: (lambda t: t.to(torch.bfloat16) if t.is_floating_point() else t)(torch.as_tensor(a))

    def _A_setup():
        B, Sq, D = (1, 2048, 640)
        H, Sk, Dh = (32, 2048, 128)
        return {'x': _w((lambda *s: torch.randn(*s, dtype=torch.bfloat16) * 0.05)(B, Sq, D)), 'k_cache': _w((lambda *s: torch.randn(*s, dtype=torch.bfloat16) * 1.6)(B, H, Sk, Dh)), 'v_cache': _w((lambda *s: torch.randn(*s, dtype=torch.bfloat16) * 0.8)(B, H, Sk, Dh)), 'wq': _w((lambda *s: torch.randn(*s, dtype=torch.bfloat16) * 1.6)(D, H * Dh) * D ** (-0.5)), 'wo': _w((lambda *s: torch.randn(*s, dtype=torch.bfloat16) * 0.8)(H * Dh, D) * (H * Dh) ** (-0.5))}
    _A_in = _A_setup()

    def _B_setup():
        B, S, D, F = (1, 2048, 640, 1728)
        return {'x': _w((lambda *s: torch.randn(*s, dtype=torch.bfloat16) * 0.05)(B, S, D)), 'W_gate': _w((lambda *s: torch.randn(*s, dtype=torch.bfloat16) * 0.4)(D, F) * (2.0 / D) ** 0.5), 'W_up': _w((lambda *s: torch.randn(*s, dtype=torch.bfloat16) * 0.4)(D, F) * (2.0 / D) ** 0.5), 'W_down': _w((lambda *s: torch.randn(*s, dtype=torch.bfloat16) * 0.4)(F, D) * (1.0 / F) ** 0.5)}
    _B_in = _B_setup()
    return {'A_x': _A_in['x'], 'A_k_cache': _A_in['k_cache'], 'A_v_cache': _A_in['v_cache'], 'A_wq': _A_in['wq'], 'A_wo': _A_in['wo'], 'B_x': _B_in['x'], 'B_W_gate': _B_in['W_gate'], 'B_W_up': _B_in['W_up'], 'B_W_down': _B_in['W_down'], 'c': _w((lambda *s: torch.randn(*s, dtype=torch.bfloat16) * 0.2)(1, 640) * 8.0), 'w_mod': _w((lambda *s: torch.randn(*s, dtype=torch.bfloat16) * 0.2)(640, 6 * 640) * 640 ** (-0.5) * 8.0)}

def reference(A_x, A_k_cache, A_v_cache, A_wq, A_wo, B_x, B_W_gate, B_W_up, B_W_down, c, w_mod):

    def _A_ref(x, k_cache, v_cache, wq, wo):
        B, Sq, D = x.shape
        H, Dh = (32, 128)
        q = (lambda x, *d: x.permute(*d))((x @ wq).reshape(B, Sq, H, Dh), 0, 2, 1, 3)
        scores = torch.einsum('bhqd,bhkd->bhqk', q, k_cache) * Dh ** (-0.5)
        p = _softmax(scores, axis=-1)
        o = torch.einsum('bhqk,bhkd->bhqd', p, v_cache)
        return (lambda x, *d: x.permute(*d))(o, 0, 2, 1, 3).reshape(B, Sq, H * Dh) @ wo

    def _B_ref(x, W_gate, W_up, W_down):
        gate = torch.einsum('bsd,df->bsf', x, W_gate)
        up = torch.einsum('bsd,df->bsf', x, W_up)
        gate = gate * (lambda x, dt: x.to(dt))(gate > 0, gate.dtype)
        h = gate * up
        return torch.einsum('bsf,fd->bsd', h, W_down)
    x = A_x
    mod = (_silu(c) @ w_mod).reshape(c.shape[0], 6, 1, -1)
    sa, ca, ga, sb, cb, gb = (mod[:, 0].clone(), mod[:, 1].clone(), mod[:, 2].clone(), mod[:, 3].clone(), mod[:, 4].clone(), mod[:, 5].clone())
    h = _layernorm(x, axis=-1) * (1 + ca) + sa
    x = x + ga * _A_ref(h, A_k_cache, A_v_cache, A_wq, A_wo)
    h = _layernorm(x, axis=-1) * (1 + cb) + sb
    x = x + gb * _B_ref(h, B_W_gate, B_W_up, B_W_down)
    return x
```

```python
class Asm:
    def __init__(self):
        self.lines = []
    def __call__(self, s):
        for l in s.strip('\n').split('\n'):
            self.lines.append('    ' + l.strip() if not l.strip().endswith(':') else l.strip())
    def label(self, l): self.lines.append(l + ':')
    def raw(self, s): self.lines.append(s)
    def text(self): return '\n'.join(self.lines) + '\n'

def vr(b, n=1): return f'v{b}' if n == 1 else f'v[{b}:{b+n-1}]'
def ar(b, n=1): return f'a{b}' if n == 1 else f'a[{b}:{b+n-1}]'
def sr(b, n=1): return f's{b}' if n == 1 else f's[{b}:{b+n-1}]'

def kernel_header(name):
    return f'''.text
.globl {name}
.p2align 8
.type {name},@function
{name}:
'''
def kernel_desc(name, vgpr, accum, sgpr=102):
    return f'''.p2align 6
.amdhsa_kernel {name}
  .amdhsa_next_free_vgpr {vgpr}
  .amdhsa_next_free_sgpr {sgpr}
  .amdhsa_accum_offset {accum}
  .amdhsa_group_segment_fixed_size 0
  .amdhsa_kernarg_size 112
  .amdhsa_user_sgpr_count 2
  .amdhsa_user_sgpr_kernarg_segment_ptr 1
  .amdhsa_system_sgpr_workgroup_id_x 1
  .amdhsa_float_denorm_mode_32 3
  .amdhsa_float_denorm_mode_16_64 3
  .amdhsa_ieee_mode 0
  .amdhsa_dx10_clamp 0
.end_amdhsa_kernel
'''
```

```python
import re
def regs(tok):
    tok = tok.strip()
    neg = tok.lstrip('-')
    m = re.fullmatch(r'abs\((.*)\)', neg)
    if m: neg = m.group(1)
    m = re.fullmatch(r'\|(.*)\|', neg)
    if m: neg = m.group(1)
    m = re.fullmatch(r'([vas])(\d+)', neg)
    if m: return [(m.group(1), int(m.group(2)))]
    m = re.fullmatch(r'([vas])\[(\d+):(\d+)\]', neg)
    if m: return [(m.group(1), i) for i in range(int(m.group(2)), int(m.group(3)) + 1)]
    if neg == 'vcc': return [('s', 'vcc')]
    if neg == 'exec': return [('s', 'exec')]
    if neg == 'm0': return [('s', 'm0')]
    return []
TRANS = ('v_exp_', 'v_log_', 'v_rcp_', 'v_rsq_', 'v_sqrt_', 'v_sin_', 'v_cos_')
class I: pass
def parse(line):
    line = line.split(';')[0].strip()
    if not line or line.endswith(':') or line.startswith('.'): return None
    p = line.split(None, 1)
    i = I(); i.text = line; i.op = p[0]
    rest = p[1] if len(p) > 1 else ''
    ops = [o.strip() for o in re.split(r',(?![^\[]*\])', rest)] if rest else []
    last = ops[-1].split() if ops else []
    mods = last[1:] if last else []
    if ops: ops[-1] = last[0] if last else ''
    i.mods = mods; i.ops = ops
    R = [regs(o) for o in ops]
    op = i.op
    i.cls = 'other'; i.dst = []; i.src = []; i.srcC = []; i.states = 1; i.data = []
    if op.startswith('v_mfma'):
        i.cls = 'mfma'; i.dst = R[0]; i.srcAB = R[1] + R[2]; i.srcC = R[3]; i.src = i.srcAB + i.srcC
        i.passes = 8 if '32x32x16' in op else 4
    elif op.startswith('v_cmpx'):
        i.cls = 'valu'; i.dst = R[0] + [('s', 'exec')]; i.src = sum(R[1:], [])
    elif op.startswith('v_permlane') and 'swap' in op:
        i.cls = 'valu'; i.dst = R[0] + R[1]; i.src = R[0] + R[1]
    elif op.startswith('v_'):
        i.cls = 'valu'; i.dst = R[0] if R else []; i.src = sum(R[1:], [])
        if op.startswith(('v_fmac', 'v_dot2c', 'v_pk_fmac')) or any(m.startswith(('row_', 'quad_perm')) for m in mods): i.src += R[0]
        if op.startswith(('v_add_co', 'v_sub_co', 'v_addc_co', 'v_div_scale', 'v_mad_u64')): i.dst = R[0] + R[1]; i.src = sum(R[2:], [])
        if op.startswith('v_cndmask') and len(ops) == 3: i.src += [('s', 'vcc')]
    elif op.startswith(('ds_read', 'ds_bpermute', 'ds_swizzle')):
        i.cls = 'dsr'; i.dst = R[0]; i.src = sum(R[1:], [])
    elif op.startswith('ds_'):
        i.cls = 'dsw'; i.src = sum(R, [])
    elif op.startswith(('buffer_load', 'global_load')):
        if 'lds' in mods or 'lds' in op: i.cls = 'dma'; i.src = sum(R, []) + [('s', 'm0')]
        else: i.cls = 'vld'; i.dst = R[0]; i.src = sum(R[1:], [])
    elif op.startswith(('buffer_store', 'buffer_atomic')):
        i.cls = 'vst'; i.src = sum(R, []); i.data = R[0]
        if op.startswith('buffer_atomic') and 'sc0' in mods: i.cls = 'vld'; i.dst = R[0]
    elif op.startswith(('buffer_wbl2', 'buffer_inv')):
        i.cls = 'vst'
    elif op.startswith(('s_load', 's_memtime', 's_memrealtime', 's_buffer_load')):
        i.cls = 'smem'; i.dst = R[0]; i.src = sum(R[1:], [])
    elif op == 's_nop':
        i.cls = 'nop'; i.states = int(ops[0], 0) + 1
    elif op == 's_waitcnt':
        i.cls = 'wait'
        m = re.search(r'vmcnt\((\d+)\)', line); i.vm = int(m.group(1)) if m else None
        m = re.search(r'lgkmcnt\((\d+)\)', line); i.lg = int(m.group(1)) if m else None
    elif op.startswith(('s_cmp', 's_bitcmp')) or op.startswith(('s_cbranch', 's_branch', 's_barrier', 's_endpgm', 's_setprio', 's_sleep')):
        i.cls = 'salu'; i.src = sum(R, [])
    elif op.startswith('s_'):
        i.cls = 'salu'; i.dst = R[0] if R else []; i.src = sum(R[1:], [])
        if 'saveexec' in op: i.dst += [('s', 'exec')]
    else:
        raise ValueError('unknown instr ' + line)
    return i
def check(lines, name=''):
    ins = [x for x in map(parse, lines) if x]
    errs = []
    t = 0
    lastw = {}
    lastC = {}
    lastst = {}
    vmq = []; lgq = []
    pend = {}
    def need(i, r, prod, pt, n, why):
        d = t - pt - 1
        if d < n: errs.append(f'{name}: {why}: need {n} have {d}: [{prod.text}] -> [{i.text}] reg {r}')
    for i in ins:
        if i.cls == 'wait':
            if i.vm is not None:
                while len(vmq) > i.vm:
                    o = vmq.pop(0)
                    for r in o.dst:
                        if pend.get(r) is o: del pend[r]
            if i.lg is not None:
                if any(o.cls == 'smem' for o in lgq) and i.lg != 0: errs.append(f'{name}: counted lgkmcnt with smem outstanding: {i.text}')
                while len(lgq) > i.lg:
                    o = lgq.pop(0)
                    for r in o.dst:
                        if pend.get(r) is o: del pend[r]
        for r in i.src + i.dst:
            if r in pend:
                o = pend[r]
                if r in i.dst and r not in i.src and o.cls == i.cls and o.cls != 'smem': continue
                errs.append(f'{name}: pending load [{o.text}] touched by [{i.text}] reg {r}')
        vec = i.cls in ('valu', 'dsr', 'dsw', 'vld', 'vst', 'dma')
        for r in set(i.src):
            if r not in lastw: continue
            pt, p = lastw[r]
            if p.cls == 'mfma':
                n = {4: 8, 8: 12}[p.passes]
                if i.cls == 'mfma':
                    if r in i.srcAB: need(i, r, p, pt, n, 'mfma->mfma AB')
                    elif i.srcC != p.dst or i.passes != p.passes: need(i, r, p, pt, {4: 6, 8: 10}[p.passes], 'mfma->mfma C overlap')
                elif vec: need(i, r, p, pt, n, 'mfma->vec read')
            elif p.cls == 'valu':
                if r[0] in 'va':
                    if i.cls == 'mfma': need(i, r, p, pt, 2, 'valu->mfma')
                    if i.cls == 'valu':
                        if p.op.startswith(TRANS) and not i.op.startswith(TRANS): need(i, r, p, pt, 1, 'trans->valu')
                        if i.op.startswith('v_permlane'): need(i, r, p, pt, 2, 'valu->permlane')
                        if i.op.startswith(('v_readfirstlane', 'v_readlane')): need(i, r, p, pt, 1, 'valu->readlane')
                        if any(m.startswith(('row_', 'quad_perm')) for m in i.mods): need(i, r, p, pt, 2, 'valu->dpp')
                        if any(m.startswith('dst_sel') for m in p.mods): need(i, r, p, pt, 1, 'sdwa->valu')
                else:
                    if i.cls in ('vld', 'vst', 'dma'): need(i, r, p, pt, 5, 'valu sgpr->vmem')
                    if i.cls == 'valu': need(i, r, p, pt, 2, 'valu sgpr->valu')
            elif p.cls == 'salu' and r == ('s', 'm0') and i.cls == 'dma': need(i, r, p, pt, 1, 'm0->dma')
        for r in set(i.dst):
            if r in lastw:
                pt, p = lastw[r]
                if p.cls == 'mfma' and i.cls in ('valu', 'dsr', 'vld'): need(i, r, p, pt, {4: 8, 8: 12}[p.passes], 'mfma->vec WAW')
                if p.cls == 'mfma' and i.cls == 'mfma' and (i.dst != p.dst or i.passes != p.passes): need(i, r, p, pt, {4: 6, 8: 10}[p.passes], 'mfma->mfma WAW')
            if r in lastC and i.cls == 'valu':
                pt, p = lastC[r]; need(i, r, p, pt, {4: 3, 8: 7}[p.passes], 'mfma C WAR')
            if r in lastst and i.cls in ('valu', 'mfma', 'dsr', 'vld'):
                pt, p = lastst[r]; need(i, r, p, pt, 2, 'store data WAR')
        if i.cls == 'mfma' and ('s', 'exec') in lastw and lastw[('s', 'exec')][1].cls == 'valu': need(i, 'exec', lastw[('s', 'exec')][1], lastw[('s', 'exec')][0], 4, 'cmpx->mfma')
        for r in i.dst: lastw[r] = (t + i.states - 1, i)
        for r in i.srcC: lastC[r] = (t, i)
        if i.cls == 'vst' and len(i.data) >= 3:
            for r in i.data: lastst[r] = (t, i)
        if i.cls in ('vld', 'vst', 'dma'):
            vmq.append(i)
            if len(vmq) > 63: errs.append(f'{name}: >63 vmem outstanding at {i.text}')
            for r in i.dst: pend[r] = i
        if i.cls in ('dsr', 'dsw', 'smem'):
            lgq.append(i)
            for r in i.dst: pend[r] = i
        t += i.states
    return errs

def check_lds(lines, name=''):
    errs = []
    vmq = []; lgq = []
    content = {}
    readers = {}
    epoch = 0
    for line in lines:
        i = parse(line)
        if not i: continue
        m = re.search(r';\s*(dma|use)=(\S+):(\S+)', line)
        i.ann = m.groups() if m else None
        if i.op == 's_barrier': epoch += 1
        def retire(o):
            if not o.ann: return
            k, slot, tag = o.ann
            if k == 'dma':
                c = content[slot]
                if o in c['pend']: c['pend'].remove(o); c['ep'] = epoch
            else:
                r = readers[slot]; r['pend'].remove(o); r['ep'] = epoch
        if i.cls == 'wait':
            if i.vm is not None:
                while len(vmq) > i.vm: retire(vmq.pop(0))
            if i.lg is not None:
                while len(lgq) > i.lg: retire(lgq.pop(0))
        if i.ann:
            k, slot, tag = i.ann
            priv = tag.endswith('!')
            if k == 'dma':
                for s2 in slot.split('+')[0:]:
                    r = readers.get(s2)
                    if r and (r['pend'] or (r['ep'] >= epoch and not r['priv'])): errs.append(f'{name}: WAR on LDS slot {s2}: {line.strip()}')
                slot = slot.split('+')[0]; i.ann = (k, slot, tag)
                c = content.get(slot)
                if not c or c['tag'] != tag: c = content[slot] = dict(tag=tag, pend=[], ep=-1)
                c['pend'].append(i)
            else:
                c = content.get(slot)
                if tag != '*':
                    if not c or c['tag'] != tag: errs.append(f'{name}: slot {slot} holds {c and c["tag"]} not {tag}: {line.strip()}')
                    elif c['pend'] or (c['ep'] >= epoch and not priv): errs.append(f'{name}: RAW on LDS slot {slot}:{tag}: {line.strip()}')
                    r = readers.setdefault(slot, dict(pend=[], ep=-1, priv=priv)); r['pend'].append(i); r['priv'] = priv
                else: i.ann = None
        if i.cls in ('vld', 'vst', 'dma'): vmq.append(i)
        if i.cls in ('dsr', 'dsw', 'smem'): lgq.append(i)
    return errs
```

```python
import sys, importlib
from gl import *
from chk import check, check_lds
def assemble(kernels, path, header=''):
    hdr = header; body = ''; desc = ''
    ok = True
    for k in kernels:
        hdr += f'; @launch kernel={k["name"]} grid=({k["grid"]},1,1) block=({k["block"]},1,1) lds={k["lds"]}\n'
    seen = set()
    for k in kernels:
        if k['name'] in seen: continue
        seen.add(k['name'])
        for n, t in enumerate(k['traces']):
            e = check(t, f'{k["name"]}#{n}') + check_lds(t, f'{k["name"]}#{n}')
            e = list(dict.fromkeys(e))
            for x in e[:30]: print('CHECK', x)
            ok &= not e
        body += kernel_header(k['name']) + '\n'.join(strip_comments(k['lines'])) + '\n'
        desc += kernel_desc(k['name'], k['vgpr'], k['accum'], k.get('sgpr', 102))
    open(path, 'w').write(hdr + '.amdgcn_target "amdgcn-amd-amdhsa--gfx950"\n' + body + '.section .rodata,"a"\n' + desc)
    print('written', path, 'checks', 'OK' if ok else 'FAILED')
    return ok
def build_all(path, opt={}, header=''):
    from k1 import gen_k1
    from k2 import gen_k2
    from k35 import gen_k35
    from k4 import gen_k4
    return assemble([gen_k1('pre_kernel'), gen_k2('attn_kernel', opt), gen_k35('oproj_kernel', 3, opt), gen_k4('gateup_kernel', opt), gen_k35('down_kernel', 5, opt)], path, header)
if __name__ == '__main__':
    build_all('a.s', dict(stamp=1))
    ref = open('adaLN_cond__mha_block_cached__glu_gated_reglu__prompt.s.ref').read()
    hdr = ''.join(l + '\n' for l in ref.split('\n') if l.startswith(';   offset') or l.startswith('; Kernarg'))
    build_all('final.s', {}, hdr)
```

```python
import re
from asmlib import *
from chk import parse
XN, MODA, MOD, MODH = 0x0, 0x280000, 0x282000, 0x286000
OB, WOF, WDF, YB, X2B, STAT, GB = 0x300000, 0x1300000, 0x1800000, 0x1A80000, 0x1D00000, 0x1F80000, 0x2000000
STAMP = 0x2800000
WS_BYTES = 0x3000000
MF = 'v_mfma_f32_16x16x32_bf16'

def resolve(lines, state=None):
    st = state if state is not None else dict(vm=[], lg=[])
    out = []
    for l in lines:
        s = l.strip()
        if s.startswith(('WAITVM', 'WAITLG')):
            k = 'vm' if s.startswith('WAITVM') else 'lg'
            force = s.split()[0].endswith('!')
            tags = s.split()[1].split(',')
            q = st[k]
            idx = max([n for n, t in enumerate(q) if t in tags], default=-1)
            if idx < 0:
                if force: raise ValueError('nothing to wait for: ' + s)
                continue
            n = len(q) - 1 - idx
            n = min(n, 63 if k == 'vm' else 15)
            st[k] = q[len(q) - n:]
            out.append(f'    s_waitcnt {"vmcnt" if k == "vm" else "lgkmcnt"}({n})')
            continue
        i = parse(l)
        if i:
            m = re.search(r';.*\bt=(\S+)', l)
            tag = m.group(1) if m else None
            if i.cls in ('vld', 'vst', 'dma'): st['vm'].append(tag)
            if i.cls in ('dsr', 'dsw', 'smem'): st['lg'].append(tag)
            if i.cls == 'wait':
                if i.vm is not None: st['vm'] = st['vm'][max(0, len(st['vm']) - i.vm):] if i.vm else []
                if i.lg is not None: st['lg'] = st['lg'][max(0, len(st['lg']) - i.lg):] if i.lg else []
        out.append(l)
    return out

def strip_comments(lines):
    out = []
    for l in lines:
        l = l.split(';')[0].rstrip()
        if l.strip(): out.append(l)
    return out

def srd(a, d, lo, hi, nbytes):
    a(f's_mov_b32 s{d}, s{lo}\ns_mov_b32 s{d+1}, s{hi}\ns_mov_b32 s{d+2}, {nbytes}\ns_mov_b32 s{d+3}, 0x20000')

def stamp(a, opt, n):
    if opt.get('stamp'): a(f's_memtime s[{66+4*n}:{67+4*n}]\ns_memrealtime s[{68+4*n}:{69+4*n}]\ns_waitcnt lgkmcnt(0)')
def stamp_out(a, opt, nst, kid, swave, ws, wpb, v=0):
    if not opt.get('stamp'): return
    a(f's_mul_i32 s98, s2, {wpb}\ns_add_u32 s98, s98, s{swave}\ns_lshl_b32 s98, s98, 6\ns_add_u32 s98, s98, {STAMP + kid*0x40000}\nv_mov_b32 v{v+2}, 0')
    for n in range(nst):
        a(f'v_mov_b32 v{v}, s{66+4*n}\nv_mov_b32 v{v+1}, s{68+4*n}\nbuffer_store_dwordx2 v[{v}:{v+1}], v{v+2}, s[{ws}:{ws+3}], s98 offen offset:{8*n}\ns_nop 1')

def codepf(a, name, vt, s0=92, n=1):
    a(f"""s_getpc_b64 s[{s0}:{s0+1}]
    L_{name}_pc:
    s_mov_b32 s{s0+2}, L_{name}_end-L_{name}_pc
    s_mov_b32 s{s0+3}, 0x20000
    v_lshlrev_b32 v{vt}, 7, v0""")
    for i in range(n):
        if i: a(f'v_add_u32 v{vt}, 0x8000, v{vt}')
        a(f'buffer_load_dword v{vt+1+i}, v{vt}, s[{s0}:{s0+3}], 0 offen ; t=pf')
```

```python
from gl import *
SC = 1.4426950408889634 * 128 ** -0.5
import struct
def f2u(f): return struct.unpack('<I', struct.pack('<f', f))[0]
def xsum(a, v, t, op='v_add_f32'):
    for sw in ('v_permlane16_swap_b32', 'v_permlane32_swap_b32'):
        a(f'v_mov_b32 v{t}, v{v}\ns_nop 1\n{sw} v{v}, v{t}\ns_nop 1\n{op} v{v}, v{v}, v{t}')
def gen_k1(name):
    a = Asm()
    a(f'''s_cmp_ge_u32 s2, 248
    s_cbranch_scc1 L_{name}_end
    s_load_dwordx2 s[4:5], s[0:1], 0
    s_load_dwordx4 s[8:11], s[0:1], 72
    s_load_dwordx2 s[12:13], s[0:1], 104
    v_lshrrev_b32 v1, 6, v0
    v_and_b32 v2, 63, v0
    v_readfirstlane_b32 s3, v1
    s_cmp_ge_u32 s2, 120
    s_cbranch_scc1 L_{name}_ln''')
    pre = list(a.lines); a.lines = []
    a('''v_lshrrev_b32 v3, 2, v0
    v_and_b32 v4, 3, v0
    v_mul_u32_u24 v5, 7680, v3
    v_lshl_add_u32 v5, v4, 4, v5
    v_lshlrev_b32 v6, 1, v3
    s_lshl_b32 s28, s2, 6
    s_waitcnt lgkmcnt(0)''')
    srd(a, 16, 8, 9, 1280); srd(a, 20, 10, 11, 640*7680); srd(a, 24, 12, 13, WS_BYTES)
    for i in range(4): a(f'buffer_load_ushort v{8+i}, v6, s[16:19], 0 offen offset:{320*i}')
    for i in range(4):
        a(f'buffer_load_dwordx4 v[{12+4*i}:{15+4*i}], v5, s[20:23], s28 offen')
        if i < 3: a(f's_add_u32 s28, s28, {160*7680}')
    a('s_waitcnt vmcnt(4)')
    for i in range(4): a(f'v_lshlrev_b32 v{8+i}, 16, v{8+i}')
    for i in range(4): a(f'v_mul_f32 v{28+i}, 0xbfb8aa3b, v{8+i}')
    for i in range(4): a(f'v_exp_f32 v{28+i}, v{28+i}')
    for i in range(4): a(f'v_add_f32 v{28+i}, 1.0, v{28+i}')
    for i in range(4): a(f'v_rcp_f32 v{28+i}, v{28+i}')
    for i in range(4): a(f'v_mul_f32 v{8+i}, v{8+i}, v{28+i}')
    for i in range(4): a(f'v_cvt_pk_bf16_f32 v{8+i}, v{8+i}, v{8+i}')
    for i in range(4): a(f'v_lshlrev_b32 v{8+i}, 16, v{8+i}')
    for i in range(4):
        a(f's_waitcnt vmcnt({3-i})')
        for j in range(4):
            w = 12 + 4*i + j
            a(f'v_lshlrev_b32 v28, 16, v{w}\nv_and_b32 v29, 0xffff0000, v{w}')
            if i == 0: a(f'v_mul_f32 v{32+2*j}, v28, v8\nv_mul_f32 v{33+2*j}, v29, v8')
            else: a(f'v_fmac_f32 v{32+2*j}, v28, v{8+i}\nv_fmac_f32 v{33+2*j}, v29, v{8+i}')
    a('s_nop 1')
    for ror in (4, 8):
        for j in range(8): a(f'v_add_f32 v{32+j}, v{32+j}, v{32+j} row_ror:{ror}')
    a('''v_lshrrev_b32 v3, 4, v0
    v_lshlrev_b32 v3, 7, v3
    v_lshl_add_u32 v3, v4, 5, v3
    v_and_b32 v7, 12, v0
    v_cmp_eq_u32 vcc, 0, v7
    s_and_saveexec_b64 s[30:31], vcc
    ds_write_b128 v3, v[32:35]
    ds_write_b128 v3, v[36:39] offset:16
    s_mov_b64 exec, s[30:31]
    s_waitcnt lgkmcnt(0)
    s_barrier
    s_cmp_lg_u32 s3, 0''')
    a(f's_cbranch_scc1 L_{name}_end')
    a('''v_and_b32 v3, 31, v2
    v_lshrrev_b32 v4, 5, v2
    v_mul_u32_u24 v4, 2560, v4
    v_lshl_add_u32 v4, v3, 2, v4''')
    for i in range(10): a(f'ds_read2_b32 v[{12+2*i}:{13+2*i}], v4 offset0:{64*(i%4)} offset1:{64*(i%4)+32}' + ('\nv_add_u32 v4, 1024, v4' if i % 4 == 3 else ''))
    a(f'''s_mul_i32 s32, s2, 3277
    s_lshr_b32 s32, s32, 16
    s_mul_i32 s33, s32, 20
    s_sub_u32 s33, s2, s33
    s_cmp_eq_u32 s32, 1
    s_cselect_b32 s34, 1.0, 0
    s_cmp_eq_u32 s32, 4
    s_cselect_b32 s34, 1.0, s34
    s_waitcnt lgkmcnt(0)''')
    for i in range(10): a(f'v_add_f32 v{12+i}, v{12+i}, v{22+i}')
    for i in range(5): a(f'v_add_f32 v{12+i}, v{12+i}, v{17+i}')
    a('''v_add_f32 v12, v12, v13
    v_add_f32 v14, v14, v15
    v_add_f32 v12, v12, v16
    v_add_f32 v12, v12, v14
    v_mov_b32 v13, v12
    s_nop 1
    v_permlane32_swap_b32 v12, v13
    s_nop 1
    v_add_f32 v12, v12, v13
    v_cvt_pk_bf16_f32 v12, v12, v12
    v_lshlrev_b32 v12, 16, v12
    v_add_f32 v12, s34, v12
    v_cvt_pk_bf16_f32 v13, v12, v12
    v_lshlrev_b32 v12, 16, v13
    v_lshlrev_b32 v5, 2, v3
    v_lshlrev_b32 v6, 1, v3
    s_mov_b32 exec_hi, 0''')
    a(f'''s_lshl_b32 s35, s2, 7
    s_add_u32 s35, s35, {MOD}
    buffer_store_dword v12, v5, s[24:27], s35 offen
    s_lshl_b32 s36, s2, 6
    s_add_u32 s36, s36, {MODH}
    buffer_store_short v13, v6, s[24:27], s36 offen
    s_cmp_ge_u32 s32, 2
    s_cbranch_scc1 L_{name}_end
    v_mul_f32 v14, {hex(f2u(SC))}, v12
    v_lshrrev_b32 v7, 3, v3
    v_lshlrev_b32 v7, 5, v7
    v_add_u32 v7, v7, v5
    s_lshl_b32 s37, s33, 8
    s_lshl_b32 s38, s32, 5
    s_sub_u32 s37, s37, s38
    s_add_u32 s37, s37, {MODA + 32}
    buffer_store_dword v14, v7, s[24:27], s37 offen
    s_endpgm''')
    gemv = list(a.lines); a.lines = []
    a.label(f'L_{name}_ln')
    a('''s_sub_u32 s28, s2, 120
    v_and_b32 v3, 15, v2
    v_lshrrev_b32 v4, 4, v2
    v_mul_u32_u24 v5, 1280, v3
    v_lshl_add_u32 v5, v4, 4, v5
    s_mul_i32 s29, s28, 20480
    s_lshl_b32 s30, s3, 7
    s_add_u32 s29, s29, s30
    s_waitcnt lgkmcnt(0)''')
    srd(a, 16, 4, 5, 2048*1280); srd(a, 24, 12, 13, WS_BYTES)
    a('''buffer_load_dwordx4 v[8:11], v5, s[16:19], s29 offen
    buffer_load_dwordx4 v[12:15], v5, s[16:19], s29 offen offset:64
    v_mul_u32_u24 v6, 48, v3
    s_lshl_b32 s31, s3, 2
    v_add_u32 v7, s31, v6
    s_lshr_b32 s32, s28, 2
    s_mul_i32 s32, s32, 20
    s_lshl_b32 s33, s3, 1
    s_add_u32 s32, s32, s33
    s_lshl_b32 s32, s32, 2
    s_and_b32 s33, s28, 3
    s_add_u32 s32, s32, s33
    s_lshl_b32 s32, s32, 10
    s_add_u32 s33, s32, 4096
    v_lshlrev_b32 v2, 4, v2
    s_waitcnt vmcnt(0)''')
    for j in range(8): a(f'v_lshlrev_b32 v{16+2*j}, 16, v{8+j}\nv_and_b32 v{17+2*j}, 0xffff0000, v{8+j}')
    def red(off):
        xsum(a, 32, 33)
        a(f'''ds_write_b32 v7, v32 offset:{off}
        s_waitcnt lgkmcnt(0)
        s_barrier
        ds_read_b128 v[36:39], v6 offset:{off}
        ds_read_b128 v[40:43], v6 offset:{off+16}
        ds_read_b64 v[44:45], v6 offset:{off+32}
        s_waitcnt lgkmcnt(0)''')
        for i in range(5): a(f'v_add_f32 v{36+i}, v{36+i}, v{41+i}')
        a('v_add_f32 v36, v36, v37\nv_add_f32 v38, v38, v39\nv_add_f32 v36, v36, v40\nv_add_f32 v36, v36, v38')
    a('v_add_f32 v32, v16, v17\nv_add_f32 v33, v18, v19')
    for j in range(4, 16, 2): a(f'v_add_f32 v32, v32, v{16+j}\nv_add_f32 v33, v33, v{17+j}')
    a('v_add_f32 v32, v32, v33')
    red(0)
    a(f'v_mul_f32 v36, {hex(f2u(1/640))}, v36')
    for j in range(16): a(f'v_sub_f32 v{16+j}, v{16+j}, v36')
    a('v_mul_f32 v32, v16, v16\nv_mul_f32 v33, v17, v17')
    for j in range(2, 16, 2): a(f'v_fmac_f32 v32, v{16+j}, v{16+j}\nv_fmac_f32 v33, v{17+j}, v{17+j}')
    a('v_add_f32 v32, v32, v33')
    red(1024)
    a(f'''v_mov_b32 v37, {hex(f2u(1e-5))}
    v_fmac_f32 v37, {hex(f2u(1/640))}, v36
    v_rsq_f32 v37, v37
    s_nop 0''')
    for j in range(16): a(f'v_mul_f32 v{16+j}, v{16+j}, v37')
    for j in range(8): a(f'v_cvt_pk_f16_f32 v{8+j}, v{16+2*j}, v{17+2*j}')
    a(f'''buffer_store_dwordx4 v[8:11], v2, s[24:27], s32 offen
    buffer_store_dwordx4 v[12:15], v2, s[24:27], s33 offen''')
    a.label(f'L_{name}_end')
    a('s_endpgm')
    ln = list(a.lines)
    return dict(name=name, lines=pre + gemv + ln, traces=[pre + gemv, pre + ln], vgpr=48, accum=48, grid=248, block=640, lds=5120)
```

```python
from gl import *
from k1 import xsum, f2u
O0, S0, P0, NEG, L0 = 0, 128, 192, 224, 240
VK, VKB, VV, VVB, DK, DV, LN16, QA, QAB, MA, DQ, TMP = 244, 245, 246, 247, 248, 249, 250, 251, 252, 253, 254, 255
XR = [128, 144, 160, 176, 192]; MB = [208, 224]; T4 = 240
AQ, AK, AV, AZ, AM, ASJ = 0, 64, 96, 128, 132, 136
XREG = 131072; MODL = 147456; FLAG = 163584
G0 = 5
PD = 3
SHIFT = 32.0
def Or(qb, db): return vr(O0 + (qb*8+db)*4, 4)
def sm_ops(e, par):
    kb, qb, i = e >> 4, (e >> 2) & 3, e & 3
    r = S0 + par*32 + qb*8 + kb*4 + i
    return r, qb, P0 + par*16 + qb*4 + kb*2 + (i >> 1)
def kread(f, half, T):
    kb, s = f >> 2, f & 3
    return f'ds_read_b128 {ar(AK+f*4,4)}, v{VK} offset:{(half*2+kb)*4096 + s*512} ; t=f{f} ; use=K{T%4}:' + (f'K{T}' if T < 32 else '*')
def vread(db, u, half, T):
    return f'ds_read_b64_tr_b16 {ar(AV+db*4+u*2,2)}, v{VV} offset:{half*8192 + u*4096 + db*256} ; t=f{8+db} ; use=V{T%4}:V{T}'
def kvdma(which, p, T):
    v, s = (DK, 4) if which == 'K' else (DV, 8)
    return f'buffer_load_dwordx4 v{v}, s[{s}:{s+3}], s{32 + (p & 1)} offen offset:{p*1024} lds ; t={which}{T} ; dma={which}{T%4}:{which}{T}'

def step(j, opt):
    par = j & 1; T = j >> 1
    out = []
    dpos = opt.get('dpos', (1, 3, 13, 15))
    for f in range(16):
        M = []
        for qb in range(4):
            if f < 8:
                kb, s = f >> 2, f & 3
                d = vr(S0 + (1-par)*32 + qb*8 + kb*4, 4)
                c = vr(NEG + qb*4, 4) if s == 0 else d
                M.append(f'{MF} {d}, {ar(AK+f*4,4)}, {ar(AQ+(qb*4+s)*4,4)}, {c}')
            else:
                M.append(f'{MF} {Or(qb,f-8)}, {ar(AV+(f-8)*4,4)}, {vr(P0+par*16+qb*4,4)}, {Or(qb,f-8)}')
        fr = f + PD
        if fr < 8: R = [kread(fr, (j+1) & 1, (j+1) >> 1)]
        elif fr < 16: R = [vread(fr-8, u, par, T) for u in range(2)]
        else: R = [kread(fr-16, j & 1, (j+2) >> 1)]
        if f in dpos and not opt.get('nodma'): R.append(kvdma('K' if par == 0 else 'V', dpos.index(f), T+3))
        S = [[], [], [], []]
        X = []
        if par == 0:
            if f == 0:
                S[0] = ['s_waitcnt vmcnt(12)'] + ([] if opt.get('nobar') else ['s_barrier'])
                S[2] = ['s_add_u32 m0, s37, s31']
            if f == 6: S[0] = ['s_add_u32 s35, s35, 16384']; S[2] = ['s_and_b32 s35, s35, 0xffff']
            if f == 7: X = [f'v_add_u32 v{VK}, s35, v{VKB}']
            if f == 14: S[0] = ['s_cmp_eq_u32 s34, 31']
        else:
            if f == 0: S[0] = ['s_add_u32 s39, s37, 65536']; S[2] = ['s_add_u32 m0, s39, s31']
            if f == 14: X = [f'v_add_u32 v{VV}, s35, v{VVB}']
            if f == 5: S[0] = ['s_add_u32 s37, s37, 16384']; S[2] = ['s_and_b32 s37, s37, 0xffff']
            if f == 6: S[0] = ['s_add_u32 s34, s34, 1']; S[2] = ['s_cmp_ge_u32 s34, 29']
            if f == 7: S[0] = ['s_cselect_b32 s6, 0, s6']
            if f == 15: S[2] = ['s_cselect_b32 s10, 0, s10', 's_add_u32 s32, s32, 16384']
        E = []; A = []; C = []
        for k in range(2):
            e = 2*(f - G0) + k
            r, qb, p = sm_ops(e % 32, (1-par) if e >= 0 else par)
            E.append(f'v_exp_f32 v{r}, v{r}')
            e -= 2
            r, qb, p = sm_ops(e % 32, (1-par) if e >= 0 else par)
            A.append(f'v_add_f32 v{L0+qb}, v{L0+qb}, v{r}')
            if k == 1: C.append(f'v_cvt_pk_bf16_f32 v{p}, v{r-1}, v{r}')
        W = [f'WAITLG! f{(f+1)%16}']
        if par == 1 and f == 15: W.append('s_add_u32 s33, s33, 16384')
        lay = opt.get('lay', 0)
        if lay == 0:
            out += [M[0]] + S[0][:1] + [E[0]] + S[0][1:] + [M[1]] + R + [A[0]] + X + [M[2]] + S[2][:1] + [E[1]] + S[2][1:] + [M[3]] + W + [A[1]] + C
        elif lay == 1:
            out += [M[0]] + S[0][:1] + [E[0]] + S[0][1:] + [M[1]] + R[:1] + [A[0]] + X + [M[2]] + R[1:] + S[2][:1] + [E[1]] + S[2][1:] + [M[3]] + W + [A[1]] + C
        elif lay == 2:
            out += [M[0]] + S[0][:1] + [E[0]] + S[0][1:] + [M[1]] + R[::-1] + [A[0]] + X + [M[2]] + S[2][:1] + [E[1]] + S[2][1:] + [M[3]] + W + [A[1]] + C
        elif lay == 3:
            if len(R) == 2: out += [M[0]] + S[0][:1] + [E[0]] + S[0][1:] + [M[1]] + R + [M[2]] + S[2][:1] + [E[1]] + S[2][1:] + [M[3]] + W + [A[0], A[1]] + C + X
            else: out += [M[0]] + S[0][:1] + [E[0]] + S[0][1:] + [M[1]] + R + [A[0]] + X + [M[2]] + S[2][:1] + [E[1]] + S[2][1:] + [M[3]] + W + [A[1]] + C
    return ['    ' + x for x in out]

def gen_k2(name, opt={}):
    a = Asm()
    QD = opt.get('qd', 3); NOCONF = opt.get('noconf')
    a(f'''s_cmp_ge_u32 s2, 256
    s_cbranch_scc1 L_{name}_end''')
    stamp(a, opt, 0)
    a(f'''s_load_dwordx4 s[44:47], s[0:1], 8
    s_load_dwordx4 s[48:51], s[0:1], 24
    s_load_dwordx2 s[52:53], s[0:1], 64
    s_load_dwordx2 s[54:55], s[0:1], 104''')
    if not opt.get('nopf'): codepf(a, name, 8)
    a(f'''v_lshrrev_b32 v1, 6, v0
    v_and_b32 v0, 63, v0
    v_readfirstlane_b32 s28, v1
    s_and_b32 s29, s2, 7
    s_lshl_b32 s29, s29, 2
    s_bfe_u32 s3, s2, 0x20003
    s_add_u32 s29, s29, s3
    s_lshr_b32 s30, s2, 5
    s_lshl_b32 s30, s30, 2
    s_add_u32 s30, s30, s28
    s_lshl_b32 s31, s28, 12
    v_lshlrev_b32 v{LN16}, 4, v0
    v_lshrrev_b32 v1, 5, v0
    v_bfe_u32 v2, v0, 2, 3
    v_and_b32 v3, 3, v0
    v_lshlrev_b32 v4, 4, v3
    v_lshl_add_u32 v4, v1, 6, v4
    v_lshl_add_u32 v{DQ}, v2, 13, v4
    s_lshl_b32 s3, s28, 17
    v_add_u32 v{DQ}, s3, v{DQ}
    s_mul_i32 s40, s30, {20*4096}
    s_lshl_b32 s41, s28, 11
    s_add_u32 s42, s41, {MODA}
    s_add_u32 m0, s41, {MODL}
    s_lshl_b32 s3, s29, 8
    s_waitcnt lgkmcnt(0)''')
    srd(a, 16, 54, 55, WS_BYTES)
    a(f'''buffer_load_dwordx4 v{LN16}, s[16:19], s42 offen lds
    buffer_load_dwordx4 v{LN16}, s[16:19], s42 offen offset:1024 lds
    s_add_u32 s12, s48, s3
    s_addc_u32 s13, s49, 0
    s_sub_u32 s12, s12, 4096
    s_subb_u32 s13, s13, 0
    s_sub_u32 s14, {640*8192 + 4096}, s3
    s_mov_b32 s15, 0x20000''')
    slots = ['X', 'K0', 'K1', 'V0', 'K2', 'V1', 'V2', 'K3', 'V3', 'X']
    def soff(sl): return XREG if sl == 'X' else int(sl[1])*16384 + (65536 if sl[0] == 'V' else 0)
    def wqdma(c):
        L = [f's_add_u32 m0, s31, {soff(slots[c])}']
        for p in range(4):
            L.append(f's_mov_b32 s43, {c*64*8192 + (p>>1)*65536 + (p&1)*128 - p*1024 + 4096}')
            L.append(f'buffer_load_dwordx4 v{DQ}, s[12:15], s43 offen offset:{p*1024} lds')
        return L
    def xnld(ks):
        L = [f'buffer_load_dwordx4 {vr(XR[ks%5]+qb*4,4)}, v{LN16}, s[16:19], s40 offen offset:{qb*1024} ; t=x{ks}' for qb in range(4)]
        return L + ['s_add_u32 s40, s40, 4096']
    CA = opt.get('ca', 4)
    for l in xnld(0) + wqdma(0): a(l)
    a(f'''s_lshl_b32 s3, s29, 19
    s_add_u32 s4, s44, s3
    s_addc_u32 s5, s45, 0
    s_sub_u32 s4, s4, 1024
    s_subb_u32 s5, s5, 0
    s_mov_b32 s6, {524288+1024}
    s_mov_b32 s7, 0x20000
    s_add_u32 s8, s46, s3
    s_addc_u32 s9, s47, 0
    s_sub_u32 s8, s8, 1024
    s_subb_u32 s9, s9, 0
    s_mov_b32 s10, {524288+1024}
    s_mov_b32 s11, 0x20000''')
    if opt.get('warm', 1):
        a(f"""s_lshr_b32 s3, s2, 5
        s_mul_i32 s43, s3, {80*8192}
        s_add_u32 s43, s43, 4096
        v_lshrrev_b32 v12, 8, v8
        v_min_u32 v12, 79, v12
        v_and_b32 v13, 128, v8
        v_lshl_add_u32 v12, v12, 13, v13
        buffer_load_dword a175, v12, s[12:15], s43 offen ; t=pf
        s_mul_i32 s43, s3, 6144
        s_add_u32 s43, s43, 1024
        v_and_b32 v12, 0x1fff, v8
        s_bitcmp0_b32 s28, 0
        s_cselect_b32 s92, s4, s8
        s_cselect_b32 s93, s5, s9
        s_mov_b32 s94, s6
        buffer_load_dword a175, v12, s[92:95], s43 offen
        s_mul_i32 s43, s3, {4*81920}
        s_bfe_u32 s3, s2, 0x20003
        s_mul_i32 s3, s3, 81920
        s_add_u32 s43, s43, s3
        buffer_load_dword a175, v8, s[16:19], s43 offen ; t=pf
        s_add_u32 s43, s43, 32768
        buffer_load_dword a175, v8, s[16:19], s43 offen ; t=pf
        s_add_u32 s43, s43, 16384
        buffer_load_dword a175, v8, s[16:19], s43 offen ; t=pf""")
    for l in xnld(1) + xnld(2) + wqdma(1) + xnld(3) + xnld(4): a(l)
    for c in range(2, CA):
        for l in wqdma(c): a(l)
    srd(a, 20, 50, 51, 4096*1280); srd(a, 24, 52, 53, 1728*1280)
    a(f'''s_mov_b32 s38, 0
    v_lshrrev_b32 v5, 2, v2
    v_lshlrev_b32 v5, 5, v5
    v_xor_b32 v4, v5, v4
    v_lshl_add_u32 v{DK}, v2, 8, v4
    v_add_u32 v{DK}, s31, v{DK}
    v_lshrrev_b32 v4, 4, v0
    v_bfe_u32 v5, v0, 1, 3
    v_and_b32 v6, 1, v0
    v_lshlrev_b32 v6, 4, v6
    v_lshl_add_u32 v6, v4, 5, v6
    v_lshl_add_u32 v{DV}, v5, 8, v6
    v_add_u32 v{DV}, s31, v{DV}
    v_bfe_u32 v5, v0, 3, 1
    v_and_b32 v6, 7, v0
    v_bfe_u32 v7, v0, 2, 1
    v_lshlrev_b32 v7, 1, v7
    v_xor_b32 v7, v7, v4
    v_lshlrev_b32 v7, 4, v7
    v_lshl_add_u32 v7, v6, 6, v7
    v_lshl_add_u32 v{VKB}, v5, 11, v7
    v_and_b32 v5, 31, v0
    v_lshlrev_b32 v5, 3, v5
    v_lshl_add_u32 v5, v1, 11, v5
    v_add_u32 v{VVB}, 0x10000, v5
    v_and_b32 v5, 15, v0
    v_lshlrev_b32 v5, 4, v5
    v_lshl_add_u32 v{QAB}, v4, 11, v5
    ''')
    if opt.get('noconf'): a(f'v_lshlrev_b32 v{QAB}, 3, v0')
    a(f'''v_add_u32 v{QA}, {soff(slots[0])}, v{QAB}
    v_lshlrev_b32 v5, 6, v4
    v_add_u32 v{MA}, {MODL}, v5
    v_mov_b32 v5, 0
    v_mov_b32 v6, {FLAG}
    ds_write_b32 v6, v5''')
    for i in range(4): a(f'v_accvgpr_write_b32 a{AZ+i}, 0')
    def modrd(ks): return [f'ds_read_b128 {vr(MB[ks%2]+4*i,4)}, v{MA} offset:{ks*256 + 16*i}' for i in range(4)]
    def modul(ks, gi):
        qb = gi >> 1; mix = []; cv = []
        for k in range(2):
            jj = 2*(gi & 1) + k; x = XR[ks%5] + qb*4 + jj; m = MB[ks%2]
            mix.append(f'v_fma_mix_f32 v{T4+2*k}, v{x}, v{m+2*jj}, v{m+8+2*jj} op_sel_hi:[1,0,0]')
            mix.append(f'v_fma_mix_f32 v{T4+2*k+1}, v{x}, v{m+2*jj+1}, v{m+8+2*jj+1} op_sel:[1,0,0] op_sel_hi:[1,0,0]')
            cv.append(f'v_cvt_pk_bf16_f32 v{x}, v{T4+2*k}, v{T4+2*k+1}')
        if opt.get('nomod'): return [], []
        return mix, cv
    def wread(G):
        ks, nt = G >> 3, G & 7
        c = ks >> 1
        return [f'ds_read_b64_tr_b16 {ar(AK+(G%16)*4+v*2,2)}, v{QA} offset:{(ks&1)*8192 + (nt>>1)*512 + v*256 + (nt&1)*8 if not NOCONF else (ks&1)*8192 + nt*1024 + v*512}' for v in range(2)]
    a('WAITVM mod,c0\ns_waitcnt lgkmcnt(0)\ns_barrier')
    stamp(a, opt, 1)
    for l in modrd(0) + modrd(1): a(l)
    for G in range(QD):
        for l in wread(G): a(l)
    a('WAITVM x0\nWAITLG m0')
    for gi in range(8):
        mix, cv = modul(0, gi)
        for l in mix + cv: a(l)
    a('WAITLG w0')
    kvafter = {1: ('K', 0), 2: ('K', 1), 3: ('V', 0), 4: ('K', 2), 5: ('V', 1), 6: ('V', 2)}
    for ks in range(20):
        c = ks >> 1
        mem = []
        if 1 <= ks <= 15: mem += xnld(ks + 4)
        if ks + 2 < 20: mem += modrd(ks + 2)
        dm = []
        if ks & 1 == 0:
            if c + CA < 10 and (c + CA < 9 or c >= 1): dm += wqdma(c + CA)
        else:
            if c - 1 in kvafter:
                w, T = kvafter[c - 1]
                dm += [f's_mov_b32 s32, {T*16384 + 1024}', f's_mov_b32 s33, {T*16384 + 128}', f's_add_u32 m0, s31, {soff(w+str(T))}', 's_nop 0'] + [kvdma(w, p, T) for p in range(4)]
        def take(L):
            o = []
            while L and L[0].startswith('s_'): o.append(L.pop(0))
            if L: o.append(L.pop(0))
            return o
        for nt in range(8):
            G = ks*8 + nt
            M = []
            for qb in range(4):
                d = Or(qb, nt)
                M.append(f'{MF} {d}, {ar(AK+(G%16)*4,4)}, {vr(XR[ks%5]+qb*4,4)}, {d if ks else 0}')
            R = wread(G + QD) if G + QD < 160 else []
            pre = []
            if (G + QD) % 16 == 0 and G + QD < 160:
                cn = (G + QD) >> 4
                kvw = ',K0' if cn == 9 else ''
                pre = [f'WAITVM c{cn}{kvw}', 's_barrier']
                if opt.get('qstamp') and cn in (1, 3, 5, 7):
                    n = 3 + cn // 2
                    pre += [f's_memtime s[{66+4*n}:{67+4*n}]', f's_memrealtime s[{68+4*n}:{69+4*n}]', 's_waitcnt lgkmcnt(0)']
            X = []
            if (G + QD + 1) % 16 == 0 and G + QD + 1 < 160: X = [f'v_add_u32 v{QA}, {soff(slots[(G+QD+1)>>4])}, v{QAB}']
            mix, cv = modul(ks + 1, nt) if ks < 19 else ([], [])
            w1 = [f'WAITVM x{ks+1}', f'WAITLG m{ks+1}'] if nt == 0 and ks < 19 else []
            m1 = take(mem)
            m2 = take(dm) if (ks & 1 == 0 and nt % 2 == 0) or (ks & 1 == 1 and nt >= 8 - QD) else []
            if ks & 1 == 1 and nt == 7: m2 += take(dm)
            W = [f'WAITLG w{G+1}'] if G + 1 < 160 else []
            for l in [M[0]] + pre + R + [M[1]] + w1 + m1 + mix[:2] + [M[2]] + m2 + mix[2:] + [M[3]] + W + cv + X: a(l)
        for l in mem + dm: a(l)
    a('s_barrier')
    stamp(a, opt, 2)
    a(f'''s_lshr_b32 s56, s2, 1
    s_and_b32 s57, s2, 1
    s_lshl_b32 s57, s57, 2
    s_add_u32 s57, s57, s28
    s_mul_i32 s58, s56, {32*1280}
    s_mul_i32 s59, s57, 160
    s_add_u32 s58, s58, s59
    s_mul_i32 s60, s28, 5120
    s_add_u32 m0, s60, {XREG}
    s_mov_b32 s61, 1120
    v_lshrrev_b32 v{TMP}, 4, v{LN16}''')
    for p in range(5):
        r = NEG + p
        a(f'''v_add_u32 v{r}, {64*p}, v{TMP}
        v_mul_u32_u24 v{r}, 6554, v{r}
        v_lshrrev_b32 v{r}, 16, v{r}
        v_mad_u32_u24 v{r}, v{r}, s61, v{LN16}''')
    for p in range(4): a(f'buffer_load_dwordx4 v{NEG+p}, s[20:23], s58 offen offset:{p*1024} lds ; dma=X+M:wo!')
    a(f's_add_u32 m0, s60, {XREG+4096}\ns_add_u32 s58, s58, 4096\nbuffer_load_dwordx4 v{NEG+4}, s[20:23], s58 offen lds ; dma=X:wo!')
    a(f'''s_lshl_b32 s62, s2, 1
    s_add_u32 s62, s62, s28
    s_cmp_lt_u32 s28, 2
    s_cselect_b32 s62, s62, 512
    s_cmp_ge_u32 s62, 432
    s_cbranch_scc1 L_{name}_nowd''')
    mark = len(a.lines)
    a(f'''s_lshr_b32 s63, s62, 3
    s_and_b32 s64, s62, 7
    s_mul_i32 s58, s63, {32*1280}
    s_mul_i32 s59, s64, 160
    s_add_u32 m0, s60, {XREG+20480}
    s_add_u32 s58, s58, s59''')
    for p in range(4): a(f'buffer_load_dwordx4 v{NEG+p}, s[24:27], s58 offen offset:{p*1024} lds')
    a(f's_add_u32 m0, s60, {XREG+20480+4096}\ns_add_u32 s58, s58, 4096\nbuffer_load_dwordx4 v{NEG+4}, s[24:27], s58 offen lds')
    wdpart = a.lines[mark:]; pro1 = a.lines[:mark]; a.lines = []
    a.label(f'L_{name}_nowd')
    for qb in range(4):
        for B in range(4):
            for k in range(4):
                o = O0 + (qb*8 + 2*B)*4 + 2*k
                a(f'v_cvt_pk_bf16_f32 v{T4+k}, v{o}, v{o+1}')
            for k in range(4): a(f'v_accvgpr_write_b32 a{AQ+(qb*4+B)*4+k}, v{T4+k}')
    pro2 = a.lines; a.lines = []
    a.label(f'L_{name}_start')
    a(f'''v_mov_b32 v{VK}, v{VKB}
    v_mov_b32 v{VV}, v{VVB}
    s_mov_b32 s34, 0
    s_mov_b32 s35, 0
    s_mov_b32 s37, {3*16384}
    s_mov_b32 s32, {3*16384 + 1024}
    s_mov_b32 s33, {3*16384 + 128}''')
    for f in range(8): a(kread(f, 0, 0))
    for i in range(8): a(f'v_mfma_f32_32x32x16_bf16 {vr(O0+16*i,16)}, {ar(AZ,4)}, {ar(AZ,4)}, 0')
    for i in range(4): a(f'v_mov_b32 v{L0+i}, 0')
    for f in range(8):
        kb, s = f >> 2, f & 3
        a(f'WAITLG f{f}')
        for qb in range(4):
            d = vr(S0 + qb*8 + kb*4, 4)
            a(f'{MF} {d}, {ar(AK+f*4,4)}, {ar(AQ+(qb*4+s)*4,4)}, {d if s else 0}')
        if f < PD: a(kread(f, 1, 0))
    a(f's_cmp_lg_u32 s38, 0\ns_cbranch_scc1 L_{name}_havemax')
    st1 = a.lines; a.lines = []
    a('s_nop 7')
    for qb in range(4):
        r = S0 + qb*8; m = NEG + qb*4
        a(f'''v_max3_f32 v{m}, v{r}, v{r+1}, v{r+2}
        v_max3_f32 v{m+1}, v{r+3}, v{r+4}, v{r+5}
        v_max3_f32 v{m}, v{m}, v{r+6}, v{r+7}
        v_max_f32 v{m}, v{m}, v{m+1}''')
    for sw in ('v_permlane16_swap_b32', 'v_permlane32_swap_b32'):
        for qb in range(4): a(f'v_mov_b32 v{NEG+qb*4+1}, v{NEG+qb*4}')
        for qb in range(4): a(('s_nop 0\n' if qb == 0 else '') + f'{sw} v{NEG+qb*4}, v{NEG+qb*4+1}')
        for qb in range(4): a(f'v_max_f32 v{NEG+qb*4}, v{NEG+qb*4}, v{NEG+qb*4+1}')
    for qb in range(4): a(f'v_sub_f32 v{NEG+qb*4}, {hex(f2u(-SHIFT))}, v{NEG+qb*4}')
    for qb in range(4):
        for k in range(1, 4): a(f'v_mov_b32 v{NEG+qb*4+k}, v{NEG+qb*4}')
    st2 = a.lines; a.lines = []
    a.label(f'L_{name}_havemax')
    a('s_nop 7')
    for e in range(32):
        r, qb, p = sm_ops(e, 0)
        a(f'v_add_f32 v{r}, v{r}, v{NEG+qb*4}')
    n0 = 2*(16 - G0)
    if opt.get('stamp') and not opt.get('qstamp'):
        a('s_memtime s[78:79]\ns_memrealtime s[80:81]\ns_waitcnt lgkmcnt(0)')
        for f in range(PD): a(kread(f, 1, 0))
    for e in range(n0):
        r, qb, p = sm_ops(e, 0)
        a(f'v_exp_f32 v{r}, v{r}')
    for e in range(n0 - 2):
        r, qb, p = sm_ops(e, 0)
        a(f'v_add_f32 v{L0+qb}, v{L0+qb}, v{r}')
        if e & 1: a(f'v_cvt_pk_bf16_f32 v{p}, v{r-1}, v{r}')
    a('WAITLG f0')
    st3 = a.lines; a.lines = []
    st = dict(vm=[], lg=[])
    pro1 = resolve(pro1, st); pro2 = resolve(pro2, st); st1 = resolve(st1, st); st2 = resolve(st2, st); st3 = resolve(st3, st)
    steps = []
    for j in range(63): steps.append(resolve(step(j, opt), st))
    A, B = steps[2], steps[3]
    for j in range(63): assert strip_comments(steps[j]) == strip_comments(steps[2 + (j & 1)]), j
    loop = ['.p2align 6', f'L_{name}_loop:'] + A + [f'    s_cbranch_scc1 L_{name}_tail'] + B + [f'    s_branch L_{name}_loop']
    a.label(f'L_{name}_tail')
    rd = [vread(db, u, 1, 31) for db in range(8) for u in range(2)]
    a('s_waitcnt lgkmcnt(0)')
    if not opt.get('qstamp'): stamp(a, opt, 4)
    for l in rd[:12]: a(l)
    for e in range(n0, 32):
        r, qb, p = sm_ops(e, 1)
        a(f'v_exp_f32 v{r}, v{r}')
    for e in range(n0 - 2, 32):
        r, qb, p = sm_ops(e, 1)
        if e & 1: a(f'v_cvt_pk_bf16_f32 v{p}, v{r-1}, v{r}')
    a('WAITLG f9')
    for l in rd[12:]: a(l)
    va = []
    for e in range(n0 - 2, 32):
        r, qb, p = sm_ops(e, 1)
        va.append(f'v_add_f32 v{L0+qb}, v{L0+qb}, v{r}')
    for sw in ('v_permlane16_swap_b32', 'v_permlane32_swap_b32'):
        va += [f'v_mov_b32 v{S0+qb}, v{L0+qb}' for qb in range(4)]
        va += [f'{sw} v{L0+qb}, v{S0+qb}' for qb in range(4)]
        va += [f'v_add_f32 v{L0+qb}, v{L0+qb}, v{S0+qb}' for qb in range(4)]
    va += [f'v_rcp_f32 v{S0+8+2*qb}, v{L0+qb}' for qb in range(4)]
    va += [f'v_add_f32 v{S0}, v{L0}, v{L0+1}', f'v_add_f32 v{S0+1}, v{L0+2}, v{L0+3}', f'v_add_f32 v{S0}, v{S0}, v{S0+1}']
    va += [f'v_cmp_ngt_f32 vcc, {hex(f2u(opt.get("thr", 2.0**64)))}, v{S0}']
    va += [f'v_mov_b32 v{S0+9+2*qb}, v{S0+8+2*qb}' for qb in range(4)]
    va += [f'v_lshrrev_b32 v{S0+2}, 6, v{LN16}', f'v_mul_u32_u24 v{S0+2}, 160, v{S0+2}', f'v_bfe_u32 v{S0+3}, v{LN16}, 4, 2',
           f'v_mad_u32_u24 v{S0+2}, v{S0+3}, 40, v{S0+2}', f'v_add_u32 v{S0+2}, s60, v{S0+2}', f'v_add_u32 v{S0+2}, {XREG}, v{S0+2}']
    for db in range(8):
        a(f'WAITLG f{8+db}')
        for qb in range(4):
            a(f'{MF} {Or(qb,db)}, {ar(AV+db*4,4)}, {vr(P0+16+qb*4,4)}, {Or(qb,db)}')
            for l in va[:2]: a(l)
            va = va[2:]
    for l in va: a(l)
    for j in range(5):
        for v in range(2): a(f'ds_read_b64_tr_b16 {ar(ASJ+4*j+2*v,2)}, v{S0+2} offset:{v*2560+8*j}')
    a(f'''s_cbranch_vccz L_{name}_ok
    v_mov_b32 v{S0+4}, 1
    v_mov_b32 v{S0+5}, {FLAG}
    ds_write_b32 v{S0+5}, v{S0+4}''')
    a.label(f'L_{name}_ok')
    a(f'''s_lshl_b32 s41, s30, 5
    s_add_u32 s41, s41, s29
    s_lshl_b32 s41, s41, 14
    s_add_u32 s41, s41, {OB}''')
    n = 0
    for B in range(4):
        for qb in range(4):
            o = O0 + (qb*8 + 2*B)*4; d = P0 + (n % 4)*4; n += 1
            for k in range(4): a(f'v_pk_mul_f32 {vr(o+2*k,2)}, {vr(o+2*k,2)}, {vr(S0+8+2*qb,2)}')
            for k in range(4): a(f'v_cvt_pk_bf16_f32 v{d+k}, v{o+2*k}, v{o+2*k+1}')
            a(f'buffer_store_dwordx4 {vr(d,4)}, v{LN16}, s[16:19], s41 offen offset:{qb*1024}')
        if B < 3: a('s_add_u32 s41, s41, 4096')
    a(f'''s_lshl_b32 s58, s57, 7
    s_add_u32 s58, s58, s56
    s_mul_i32 s58, s58, 5120
    s_add_u32 s58, s58, {WOF}
    s_add_u32 s59, s58, 4096
    s_waitcnt lgkmcnt(0)''')
    for j in range(5): a(f'buffer_store_dwordx4 {ar(ASJ+4*j,4)}, v{LN16}, s[16:19], s{58 if j < 4 else 59} offen offset:{(j%4)*1024}')
    a(f's_cmp_ge_u32 s62, 432\ns_cbranch_scc1 L_{name}_nowd2')
    for j in range(5):
        for v in range(2): a(f'ds_read_b64_tr_b16 {ar(ASJ+20+4*j+2*v,2)}, v{S0+2} offset:{20480+v*2560+8*j}')
    a(f'''s_mul_i32 s58, s64, 54
    s_add_u32 s58, s58, s63
    s_mul_i32 s58, s58, 5120
    s_add_u32 s58, s58, {WDF}
    s_add_u32 s59, s58, 4096
    s_waitcnt lgkmcnt(0)''')
    for j in range(5): a(f'buffer_store_dwordx4 {ar(ASJ+20+4*j,4)}, v{LN16}, s[16:19], s{58 if j < 4 else 59} offen offset:{(j%4)*1024}')
    a.label(f'L_{name}_nowd2')
    if not opt.get('qstamp'): stamp(a, opt, 5)
    if opt.get('stamp'): a('s_waitcnt vmcnt(0)')
    if not opt.get('qstamp'): stamp(a, opt, 6)
    stamp_out(a, opt, 7, 1, 28, 16, 4, S0+8)
    a(f'''s_cmp_lg_u32 s38, 0
    s_cbranch_scc1 L_{name}_end
    v_mov_b32 v{S0+5}, {FLAG}
    s_barrier
    ds_read_b32 v{S0+4}, v{S0+5}
    s_waitcnt lgkmcnt(0)
    v_readfirstlane_b32 s3, v{S0+4}
    s_cmp_eq_u32 s3, 0
    s_cbranch_scc1 L_{name}_end''')
    tail = resolve(a.lines, st); a.lines = []
    a(f'''s_mov_b32 s38, 1
    s_mov_b32 s6, {524288+1024}
    s_mov_b32 s10, {524288+1024}
    s_mov_b32 s32, 1024
    s_mov_b32 s33, 128
    s_mov_b32 s34, 0
    s_mov_b32 m0, s31
    v_mov_b32 v{VK}, v{VKB}
    s_waitcnt vmcnt(0)''')
    for qb in range(4): a(f'v_mov_b32 v{NEG+qb*4}, 0xff800000')
    fb1 = a.lines; a.lines = []
    a.label(f'L_{name}_fbloop')
    a('s_barrier')
    for p in range(4): a(kvdma('K', p, 0))
    a('s_waitcnt vmcnt(0)\ns_barrier')
    for half in range(2):
        for f in range(8): a(kread(f, half, 0))
        a('s_waitcnt lgkmcnt(0)')
        for f in range(8):
            kb, s = f >> 2, f & 3
            for qb in range(4):
                d = vr(S0 + qb*8 + kb*4, 4)
                a(f'{MF} {d}, {ar(AK+f*4,4)}, {ar(AQ+(qb*4+s)*4,4)}, {d if s else 0}')
        a('s_nop 7')
        for qb in range(4):
            for k in range(4): a(f'v_max3_f32 v{NEG+qb*4}, v{NEG+qb*4}, v{S0+qb*8+2*k}, v{S0+qb*8+2*k+1}')
    a(f'''s_add_u32 s32, s32, 16384
    s_add_u32 s33, s33, 16384
    s_add_u32 s34, s34, 1
    s_cmp_lt_u32 s34, 32
    s_cbranch_scc1 L_{name}_fbloop''')
    fb2 = a.lines; a.lines = []
    for qb in range(4): xsum(a, NEG+qb*4, NEG+qb*4+1, 'v_max_f32')
    for qb in range(4):
        a(f'v_sub_f32 v{NEG+qb*4}, 0, v{NEG+qb*4}')
        for k in range(1, 4): a(f'v_mov_b32 v{NEG+qb*4+k}, v{NEG+qb*4}')
    a('s_barrier')
    for w, T in kvafter.values():
        a(f's_mov_b32 s32, {T*16384 + 1024}\ns_mov_b32 s33, {T*16384 + 128}\ns_add_u32 m0, s31, {soff(w+str(T))}\ns_nop 0')
        for p in range(4): a(kvdma(w, p, T))
    a(f's_waitcnt vmcnt(0)\ns_barrier\ns_branch L_{name}_start')
    fb3 = a.lines; a.lines = []
    end = [f'L_{name}_end:', '    s_endpgm']
    lines = pro1 + wdpart + pro2 + st1 + st2 + st3 + loop + tail + fb1 + fb2 + fb3 + end
    allsteps = sum(steps, [])
    tr1 = pro1 + pro2 + st1 + st2 + st3 + allsteps + tail + fb1 + fb2 + fb2 + fb3 + st1 + st3 + allsteps + tail
    tr2 = pro1 + wdpart + pro2 + st1 + st2 + st3 + allsteps + tail
    return dict(name=name, lines=lines, traces=[tr1, tr2], vgpr=256+176, accum=256, grid=256, block=256, lds=163840)
```

```python
from gl import *
from k1 import xsum, f2u
def gen_k35(name, which, opt={}):
    k3 = which == 3
    NKB = 128 if k3 else 54
    NS = 32 if k3 else 14
    ACT, WGT = (OB, WOF) if k3 else (GB, WDF)
    D = opt.get('D', 6)
    ACC = 0; VA = 80; LN16 = 84; VX = 85; VM = 86; WA = 87; RA = 90; XR = 92; GA = 104; CB = 124; T = 144
    a = Asm()
    a(f'''s_cmp_ge_u32 s2, 256
    s_cbranch_scc1 L_{name}_end''')
    stamp(a, opt, 0)
    a(f'''s_load_dwordx2 s[44:45], s[0:1], {0 if k3 else 88}
    s_load_dwordx2 s[46:47], s[0:1], 104
    v_lshrrev_b32 v1, 6, v0
    v_and_b32 v0, 63, v0
    v_readfirstlane_b32 s28, v1
    s_and_b32 s30, s2, 7
    s_lshl_b32 s30, s30, 2
    s_bfe_u32 s3, s2, 0x20003
    s_add_u32 s30, s30, s3
    s_lshr_b32 s29, s2, 5
    v_lshlrev_b32 v{LN16}, 4, v0''')
    if k3: a('s_lshl_b32 s31, s28, 5')
    else: a('s_mul_i32 s31, s28, 14\ns_cmp_eq_u32 s28, 3\ns_cselect_b32 s31, 41, s31')
    a(f'''s_mul_i32 s32, s30, {NKB}
    s_add_u32 s32, s32, s31
    s_lshl_b32 s32, s32, 12
    s_add_u32 s32, s32, {ACT}
    s_mul_i32 s33, s29, {NKB}
    s_add_u32 s33, s33, s31
    s_mul_i32 s33, s33, 5120
    s_add_u32 s33, s33, {WGT}
    s_add_u32 s34, s33, 4096''')
    for i in range(4):
        a(f's_add_u32 s3, s28, {i}\ns_and_b32 s{36+i}, s3, 3\ns_lshl_b32 s3, s{36+i}, 10\nv_add_u32 v{VA+i}, s3, v{LN16}')
    a('s_waitcnt lgkmcnt(0)')
    srd(a, 16, 46, 47, WS_BYTES)
    if not k3:
        srd(a, 20, 46, 47, WS_BYTES)
        a('s_cmp_ge_u32 s28, 2\ns_cselect_b32 s22, 0, s22')
    def loads(ks):
        b = (ks % D)*36
        s = 20 if (not k3 and ks == NS-1) else 16
        L = []
        for j in range(5): L.append(f'buffer_load_dwordx4 {ar(b+16+4*j,4)}, v{LN16}, s[{s}:{s+3}], s{33 if j < 4 else 34} offen offset:{(j%4)*1024} ; t=k{ks}')
        for i in range(4): L.insert(2*i+1, f'buffer_load_dwordx4 {ar(b+4*i,4)}, v{VA+i}, s[{s}:{s+3}], s32 offen ; t=k{ks}')
        return L, ['s_add_u32 s32, s32, 4096', 's_add_u32 s33, s33, 5120', 's_add_u32 s34, s34, 5120']
    for ks in range(D):
        L, S = loads(ks)
        for l in L + S: a(l)
    srd(a, 4, 44, 45, 2048*1280)
    a(f'''v_and_b32 v2, 15, v0
    v_lshrrev_b32 v3, 4, v0
    v_mul_u32_u24 v{VX}, 1280, v2
    v_mad_u32_u24 v{VX}, v3, 40, v{VX}
    v_mul_u32_u24 v{VM}, 80, v3
    s_lshl_b32 s40, s30, 2
    s_add_u32 s40, s40, s28
    s_mul_i32 s41, s40, {16*1280}
    s_mul_i32 s3, s29, 160
    s_add_u32 s41, s41, s3
    s_add_u32 s42, s41, {X2B}
    s_mul_i32 s43, s29, 320
    s_add_u32 s43, s43, {MOD + (2 if k3 else 5)*2560}
    s_add_u32 s48, s43, {2*2560}
    s_mul_i32 s3, s28, 15360
    v_add_u32 v{RA}, s3, v{LN16}
    v_lshlrev_b32 v91, 6, v2''')
    for i in range(1, 4): a(f's_mul_i32 s3, s{36+i}, 15360\ns_add_u32 s3, s3, {(i-1)*5120}\nv_add_u32 v{WA+i-1}, s3, v{LN16}')
    ep = []
    xs, xo = ('s[4:7]', 's41') if k3 else ('s[16:19]', 's42')
    ep += [f'buffer_load_dwordx4 {vr(XR,4)}, v{VX}, {xs}, {xo} offen ; t=e', f'buffer_load_dwordx4 {vr(XR+4,4)}, v{VX}, {xs}, {xo} offen offset:16 ; t=e',
           f'buffer_load_dwordx2 {vr(XR+8,2)}, v{VX}, {xs}, {xo} offen offset:32 ; t=e']
    ep += [f'buffer_load_dwordx4 {vr(GA+4*j,4)}, v{VM}, s[16:19], s43 offen offset:{16*j} ; t=e' for j in range(5)]
    if k3: ep += [f'buffer_load_dwordx4 {vr(CB+4*j,4)}, v{VM}, s[16:19], s48 offen offset:{16*j} ; t=e' for j in range(5)]
    for ks in range(NS):
        b = (ks % D)*36
        a(f'WAITVM k{ks}')
        if ks == 0: stamp(a, opt, 1)
        L, S = loads(ks + D - 1) if 1 <= ks and ks + D - 1 < NS else ([], [])
        if not L and ks > 0:
            L = ep[:9]; ep = ep[9:]
        n = 0
        for j in range(5):
            for i in range(4):
                d = vr(ACC + (i*5+j)*4, 4)
                a(f'{MF} {d}, {ar(b+16+4*j,4)}, {ar(b+4*i,4)}, {d if ks else 0}')
                if n % 2 == 0 and L: a(L.pop(0))
                elif not L and S: a(S.pop(0))
                n += 1
        assert not L and not S
    assert not ep
    stamp(a, opt, 2)
    a('s_nop 7')
    for i in range(1, 4):
        for j in range(5): a(f'ds_write_b128 v{WA+i-1}, {vr(ACC+(i*5+j)*4,4)} offset:{j*1024}')
    a('s_waitcnt lgkmcnt(0)\ns_barrier')
    for i in range(3):
        for j in range(5): a(f'ds_read_b128 {vr(ACC+20+(i*5+j)*4,4)}, v{RA} offset:{i*5120+j*1024} ; t=r{i}')
    a('s_waitcnt vmcnt(0)')
    for k in range(10): a(f'v_lshlrev_b32 v{T+2*k}, 16, v{XR+k}\nv_and_b32 v{T+2*k+1}, 0xffff0000, v{XR+k}')
    for i in range(3):
        a(f'WAITLG r{i}')
        for k in range(10): a(f'v_pk_add_f32 {vr(ACC+2*k,2)}, {vr(ACC+2*k,2)}, {vr(ACC+20+20*i+2*k,2)}')
    for k in range(10): a(f'v_pk_fma_f32 {vr(ACC+2*k,2)}, {vr(ACC+2*k,2)}, {vr(GA+2*k,2)}, {vr(T+2*k,2)}')
    for k in range(10): a(f'v_cvt_pk_bf16_f32 v{XR+k}, v{ACC+2*k}, v{ACC+2*k+1}')
    os_, oo = ('s[16:19]', 's42') if k3 else ('s[4:7]', 's41')
    a(f'''buffer_store_dwordx4 {vr(XR,4)}, v{VX}, {os_}, {oo} offen
    buffer_store_dwordx4 {vr(XR+4,4)}, v{VX}, {os_}, {oo} offen offset:16
    buffer_store_dwordx2 {vr(XR+8,2)}, v{VX}, {os_}, {oo} offen offset:32''')
    if k3:
        for k in range(10): a(f'v_lshlrev_b32 v{T+2*k}, 16, v{XR+k}\nv_and_b32 v{T+2*k+1}, 0xffff0000, v{XR+k}')
        for k in range(10): a(f'v_pk_mul_f32 {vr(CB+2*k,2)}, {vr(CB+2*k,2)}, {vr(T+2*k,2)}')
        for k in range(10): a(f'v_cvt_pk_bf16_f32 v{20+k}, v{CB+2*k}, v{CB+2*k+1}')
        a(f'''s_lshr_b32 s50, s29, 1
        s_mul_i32 s50, s50, 5
        s_mul_i32 s3, s30, 20
        s_add_u32 s50, s50, s3
        s_lshl_b32 s50, s50, 2
        s_add_u32 s50, s50, s28
        s_lshl_b32 s50, s50, 10
        s_add_u32 s50, s50, {YB}
        s_and_b32 s3, s29, 1
        s_lshl_b32 s51, s3, 13
        s_add_u32 s51, s51, s50
        s_add_u32 s52, s51, 4096
        s_lshl_b32 s53, s3, 3
        s_add_u32 s53, s53, s50
        s_add_u32 s53, s53, 16384
        buffer_store_dwordx4 v[20:23], v{LN16}, s[16:19], s51 offen
        buffer_store_dwordx4 v[24:27], v{LN16}, s[16:19], s52 offen
        buffer_store_dwordx2 v[28:29], v{LN16}, s[16:19], s53 offen
        v_pk_add_f32 v[0:1], {vr(T,2)}, {vr(T+2,2)}''')
        for k in range(2, 10): a(f'v_pk_add_f32 v[0:1], v[0:1], {vr(T+2*k,2)}')
        a('v_add_f32 v0, v0, v1')
        xsum(a, 0, 1)
        a(f'v_mul_f32 v2, {hex(f2u(-1/80))}, v0\nv_mov_b32 v3, v2')
        for k in range(10): a(f'v_pk_add_f32 {vr(T+2*k,2)}, {vr(T+2*k,2)}, v[2:3]')
        a(f'v_pk_mul_f32 v[4:5], {vr(T,2)}, {vr(T,2)}')
        for k in range(1, 10): a(f'v_pk_fma_f32 v[4:5], {vr(T+2*k,2)}, {vr(T+2*k,2)}, v[4:5]')
        a('v_add_f32 v1, v4, v5')
        xsum(a, 1, 2)
        a(f'''s_lshl_b32 s54, s40, 10
        s_lshl_b32 s3, s29, 3
        s_add_u32 s54, s54, s3
        s_add_u32 s54, s54, {STAT}
        s_mov_b64 exec, 0xffff
        buffer_store_dwordx2 v[0:1], v91, s[16:19], s54 offen''')
    stamp(a, opt, 3)
    if opt.get('stamp'): a('s_waitcnt vmcnt(0)')
    stamp(a, opt, 4)
    stamp_out(a, opt, 5, which - 1, 28, 16, 4, 40)
    a.label(f'L_{name}_end')
    a('s_endpgm')
    lines = resolve(a.lines)
    return dict(name=name, lines=lines, traces=[lines], vgpr=168 + D*36, accum=168, grid=256, block=256, lds=61440)
```

```python
from gl import *
from k1 import xsum, f2u
def gen_k4(name, opt={}):
    ACC = 0; UT = 128; UV = 136; MEAN = 200; RSTD = 208; LN16 = 216; DW = 217; BE = 218; AE = 222; VMH = 226; T = 228
    AY = 0; AW = 128; AU = 192; AMF = 208
    RD = 8; PD = 3
    a = Asm()
    a(f'''s_cmp_ge_u32 s2, 216
    s_cbranch_scc1 L_{name}_end''')
    stamp(a, opt, 0)
    a(f'''s_load_dwordx4 s[44:47], s[0:1], 48
    s_load_dwordx2 s[48:49], s[0:1], 104
    v_lshrrev_b32 v1, 6, v0
    v_and_b32 v0, 63, v0
    v_readfirstlane_b32 s28, v1
    s_and_b32 s3, s2, 7
    s_mul_i32 s3, s3, 27
    s_lshr_b32 s29, s2, 3
    s_add_u32 s3, s3, s29
    s_lshr_b32 s29, s3, 3
    s_and_b32 s30, s3, 7
    s_lshl_b32 s30, s30, 2
    s_add_u32 s30, s30, s28
    v_lshlrev_b32 v{LN16}, 4, v0
    v_lshrrev_b32 v4, 4, v0
    v_bfe_u32 v5, v0, 1, 3
    v_and_b32 v6, 1, v0
    v_lshlrev_b32 v7, 4, v6
    v_lshl_add_u32 v7, v4, 5, v7
    v_mul_u32_u24 v5, 3456, v5
    v_add_u32 v{DW}, v5, v7
    v_mul_u32_u24 v5, 40, v4
    v_mul_u32_u24 v6, 1280, v6
    v_sub_u32 v5, v5, v6
    v_add_u32 v{VMH}, 1280, v5
    s_mul_i32 s32, s30, {20*4096}
    s_add_u32 s32, s32, {YB}
    s_lshr_b32 s3, s28, 1
    s_mul_i32 s33, s3, {5*8*3456}
    s_lshl_b32 s34, s29, 7
    s_add_u32 s33, s33, s34
    s_mul_i32 s34, s3, {5*2048}
    s_and_b32 s3, s28, 1
    s_lshl_b32 s35, s3, 10
    s_add_u32 s34, s34, s35
    s_cmp_eq_u32 s3, 0
    s_waitcnt lgkmcnt(0)
    s_cselect_b32 s4, s44, s46
    s_cselect_b32 s5, s45, s47
    s_mov_b32 s6, {640*3456}
    s_mov_b32 s7, 0x20000''')
    srd(a, 16, 48, 49, WS_BYTES)
    def wdma(hg):
        L = []
        for o in range(5):
            L += [f's_add_u32 m0, s34, {hg*20480 + o*2048}', f's_add_u32 s36, s33, {(hg*10+o)*8*3456}',
                  f'buffer_load_dwordx4 v{DW}, s[4:7], s36 offen lds']
        return L
    def yld(ks):
        m, b = divmod(ks, 5)
        L = [f'buffer_load_dwordx4 {ar(AY+(ks%RD)*16+qb*4,4)}, v{LN16}, s[16:19], s32 offen offset:{qb*1024} ; t=y{ks}' for qb in range(4)]
        r = AMF + (ks % RD)*4
        if b < 4: L.append(f'buffer_load_dwordx4 {ar(r,4)}, v{VMH}, s[16:19], s37 offen offset:{320*m + 160*(b>>1) + 16*(b&1)} ; t=y{ks}')
        else: L += [f'buffer_load_dwordx2 {ar(r+2*p,2)}, v{VMH}, s[16:19], s37 offen offset:{320*m + 160*p + 32} ; t=y{ks}' for p in range(2)]
        return L + ['s_add_u32 s32, s32, 4096']
    a(f's_mov_b32 s37, {MODH + 3*1280}')
    for l in wdma(0) + yld(0) + yld(1) + wdma(1) + yld(2) + yld(3): a(l)
    a(f'''v_and_b32 v2, 15, v0
    v_lshlrev_b32 v3, 6, v2
    v_lshl_add_u32 v3, v4, 4, v3
    s_lshl_b32 s38, s30, 12
    s_add_u32 s38, s38, {STAT}''')
    for qb in range(4): a(f'buffer_load_dwordx4 {vr(UV+4*qb,4)}, v3, s[16:19], s38 offen offset:{qb*1024} ; t=st')
    for l in yld(4) + wdma(2) + yld(5) + yld(6): a(l)
    for p in range(2):
        a(f'''v_mad_u32_u24 v5, v4, 5, {p}
        v_lshrrev_b32 v6, 1, v5
        v_and_b32 v5, 1, v5
        v_lshlrev_b32 v5, 7, v5
        v_lshl_add_u32 v5, v6, 11, v5
        v_lshl_add_u32 v{BE+p}, v2, 3, v5
        s_lshl_b32 s3, s28, 9
        v_add_u32 v{BE+2+p}, s3, v{BE+p}''')
    for p in range(4): a(f'v_mov_b32 v{AE+p}, v{BE+p}')
    def toff(ks, v):
        m, b = divmod(ks, 5)
        par, t = ((b >> 1), 2*(b & 1) + v) if b < 4 else (v, 4)
        return t & 1, par*20480 + (t >> 1)*2048, 2*m + par
    def wread(G):
        ks, nt = G >> 3, G & 7; L = []
        for v in range(2):
            p, off, hg = toff(ks, v)
            L.append(f'ds_read_b64_tr_b16 {ar(AW+(G%16)*4+2*v,2)}, v{AE+p} offset:{off + nt*256}')
        return L
    def uread(ks, i):
        L = []
        for v in range(2):
            p, off, hg = toff(ks, v)
            L.append(f'ds_read_b64_tr_b16 {ar(AU+i*4+2*v,2)}, v{AE+2+p} offset:{off + i*256}')
        return L
    s = Asm()
    s('WAITVM st')
    for qb in range(4): s(f'v_add_f32 v{MEAN+2*qb}, v{UV+4*qb}, v{UV+4*qb+2}')
    def xs4(base):
        for sw in ('v_permlane16_swap_b32', 'v_permlane32_swap_b32'):
            for qb in range(4): s(f'v_mov_b32 v{base+2*qb+1}, v{base+2*qb}')
            for qb in range(4): s(f'{sw} v{base+2*qb}, v{base+2*qb+1}')
            for qb in range(4): s(f'v_add_f32 v{base+2*qb}, v{base+2*qb}, v{base+2*qb+1}')
    xs4(MEAN)
    for qb in range(4): s(f'v_mul_f32 v{MEAN+2*qb}, {hex(f2u(-1/640))}, v{MEAN+2*qb}')
    for qb in range(4):
        u = UV + 4*qb
        s(f'''v_fma_f32 v{u}, v{u}, s39, v{MEAN+2*qb}
        v_fma_f32 v{u+2}, v{u+2}, s39, v{MEAN+2*qb}
        v_add_f32 v{RSTD+2*qb}, v{u+1}, v{u+3}
        v_mul_f32 v{u}, v{u}, v{u}
        v_fmac_f32 v{u}, v{u+2}, v{u+2}
        v_fmac_f32 v{RSTD+2*qb}, {hex(f2u(80.0))}, v{u}''')
    xs4(RSTD)
    for qb in range(4): s(f'v_fma_f32 v{RSTD+2*qb}, v{RSTD+2*qb}, s40, v{T}')
    for qb in range(4): s(f'v_rsq_f32 v{RSTD+2*qb}, v{RSTD+2*qb}')
    for qb in range(4): s(f'v_mov_b32 v{MEAN+2*qb+1}, v{MEAN+2*qb}')
    for qb in range(4): s(f'v_mov_b32 v{RSTD+2*qb+1}, v{RSTD+2*qb}')
    sv = [x.strip() for x in s.lines]
    a(f's_mov_b32 s39, {hex(f2u(1/80))}\ns_mov_b32 s40, {hex(f2u(1/640))}\nv_mov_b32 v{T}, {hex(f2u(1e-5))}')
    a('WAITVM h0\ns_barrier')
    stamp(a, opt, 1)
    for G in range(PD):
        for l in wread(G): a(l)
    a('WAITVM y0\nWAITLG w0')
    def take(L):
        o = []
        while L and L[0].startswith('s_'): o.append(L.pop(0))
        if L: o.append(L.pop(0))
        return o
    landed = 0
    for ks in range(20):
        m, b = divmod(ks, 5)
        mem = yld(ks + RD - 1) if ks + RD - 1 < 20 else []
        dm = []
        if b == 0 and 2*m + 3 < 8: dm = wdma(2*m + 3)
        if b == 2 and 2*m + 4 < 8: dm = wdma(2*m + 4)
        for nt in range(8):
            G = ks*8 + nt
            M = [f'{MF} {vr(ACC+(qb*8+nt)*4,4)}, {ar(AW+(G%16)*4,4)}, {ar(AY+(ks%RD)*16+qb*4,4)}, {vr(ACC+(qb*8+nt)*4,4) if ks else 0}' for qb in range(4)]
            pre = []; X = []
            if G + PD < 160:
                hg = max(toff((G+PD) >> 3, v)[2] for v in range(2))
                if hg > landed: pre = [f'WAITVM h{hg}', 's_barrier']; landed = hg
                R = wread(G + PD)
            else: R = []
            if (G + PD + 1) % 40 == 0 and G + PD + 1 < 160: X = [f'v_add_u32 v{AE+p}, {((G+PD+1)//40)*40960}, v{BE+p}' for p in range(2)]
            if b == 4 and nt == 7 and m < 3: X += [f'v_add_u32 v{AE+2+p}, {(m+1)*40960}, v{BE+2+p}' for p in range(2)]
            U = uread(ks, nt) if nt < 2 else []
            m1 = take(mem) if nt >= 1 else []
            m2 = take(dm) if nt >= 2 else []
            MU = []
            if nt >= 6:
                i = nt - 6; d = vr(UT + 4*i, 4)
                MU = [f'WAITLG u{ks}_{i}', f'{MF} {d}, {ar(AU+4*i,4)}, {ar(AMF+(ks%RD)*4,4)}, {d if ks else 0}']
            W = [f'WAITLG w{G+1}'] if G + 1 < 160 else []
            if nt == 7 and ks < 19: W.append(f'WAITVM y{ks+1}')
            if ks >= 4 and not X: X = sv[:2]; sv = sv[2:]
            for l in [M[0]] + pre + R + [M[1]] + U + m1 + [M[2]] + m2 + [M[3]] + X + MU + W: a(l)
        for l in mem + dm: a(l)
    assert not sv
    stamp(a, opt, 2)
    a(f'''v_bfe_u32 v{T}, v{LN16}, 4, 1
    v_lshrrev_b32 v{T+1}, 8, v{LN16}
    v_lshlrev_b32 v{T+1}, 4, v{T+1}
    v_lshl_add_u32 v{T}, v{T}, 9, v{T+1}
    s_lshl_b32 s3, s28, 7
    v_add_u32 v{T}, s3, v{T}
    s_mul_i32 s41, s30, 54
    s_lshl_b32 s3, s29, 1
    s_add_u32 s41, s41, s3
    s_lshl_b32 s41, s41, 12
    s_add_u32 s41, s41, {GB}
    ds_write_b128 v{T}, {vr(UT,4)} ; dma=H0:ut
    ds_write_b128 v{T}, {vr(UT+4,4)} offset:64 ; dma=H0:ut
    s_waitcnt lgkmcnt(0)
    s_barrier''')
    order = [0, 4, 1, 5, 2, 6, 3, 7]
    for n, nt in enumerate(order):
        if n == 7: a('WAITLG ut0')
        for r in range(2): a(f'ds_read_b128 {vr(UV+(nt*2+r)*4,4)}, v{T+1} offset:{r*512+nt*64}')
    n = 0
    for B in range(2):
        a(f'WAITLG ut{2*B+5}')
        for qb in range(4):
            d = T + 4 + (n % 4)*4; n += 1
            for ft in (2*B, 2*B+1):
                for mat in range(2):
                    nt = mat*4 + ft
                    for k in range(2):
                        c = vr(ACC + (qb*8+nt)*4 + 2*k, 2)
                        a(f'v_pk_fma_f32 {c}, {vr(UV+nt*8+2*k,2)}, {vr(MEAN+2*qb,2)}, {c}')
                for mat in range(2):
                    nt = mat*4 + ft
                    for k in range(2):
                        c = vr(ACC + (qb*8+nt)*4 + 2*k, 2)
                        a(f'v_pk_fma_f32 {c}, {c}, {vr(RSTD+2*qb,2)}, {vr(UV+nt*8+4+2*k,2)}')
                g = ACC + (qb*8+ft)*4; u = g + 16
                for k in range(4): a(f'v_max_f32 v{g+k}, 0, v{g+k}')
                for k in range(2): a(f'v_pk_mul_f32 {vr(g+2*k,2)}, {vr(g+2*k,2)}, {vr(u+2*k,2)}')
                for k in range(2): a(f'v_cvt_pk_bf16_f32 v{d+2*(ft&1)+k}, v{g+2*k}, v{g+2*k+1}')
            a(f'buffer_store_dwordx4 {vr(d,4)}, v{LN16}, s[16:19], s41 offen offset:{qb*1024}')
        if B == 0: a('s_add_u32 s41, s41, 4096')
    stamp(a, opt, 3)
    if opt.get('stamp'): a('s_waitcnt vmcnt(0)')
    stamp(a, opt, 4)
    stamp_out(a, opt, 5, 3, 28, 16, 4, 40)
    a.label(f'L_{name}_end')
    a('s_endpgm')
    lines = resolve(a.lines)
    return dict(name=name, lines=lines, traces=[lines], vgpr=256+240, accum=256, grid=216, block=256, lds=163840)
```

```python
from gl import *
from k1 import xsum, f2u, SC
FLG = 0x1FC0000
FX, FM, FW, FD, FO, FY, FG = 0, 4096, 8192, 12288, 16384, 20480, 24576
LN16, STV = 250, 255
O0, S0, P0, NEG, L0 = 0, 128, 192, 224, 240
VK, VKB, VV, VVB, DK, DV, QA, QAB, MA, DQ = 244, 245, 246, 247, 248, 249, 251, 252, 253, 254
XR = [128, 144, 160, 176, 192]; MB = [208, 224]; T4 = 240
AQ, AK, AV, AZ, ASJ, ADUM = 0, 64, 96, 128, 136, 255
XREG = 131072; MODL = 147456; SCR = 155648; FLAG = 163584
G0 = 5; PD = 3; SHIFT = 32.0
PX, PK, PV_, PWQ, PWO, PWG, PWU, PWD, PC, PWM, POUT, PDBG, PWS = 44, 46, 48, 50, 52, 56, 58, 60, 62, 64, 66, 68, 70
SC1 = ' sc1'

class Gen:
    def __init__(self, name, opt):
        self.name = name; self.opt = opt; self.a = Asm(); self.seg = {}; self.order = []; self.nl = 0
    def cut(self, nm):
        self.seg[nm] = self.a.lines; self.order.append(nm); self.a.lines = []
    def L(self, s): return f'L_{self.name}_{s}'
    def stamp(self, n):
        if self.opt.get('stamp'):
            self.a(f's_memtime s[96:97]\ns_memrealtime s[98:99]\ns_waitcnt lgkmcnt(0)\nv_writelane_b32 v{STV}, s96, {2*n}\nv_writelane_b32 v{STV}, s98, {2*n+1}')
    def poll(self, loads, regs):
        a = self.a; self.nl += 1; l = self.L(f'poll{self.nl}')
        a('s_mov_b32 s82, 0'); a.label(l)
        for x in loads: a(x)
        a('s_waitcnt vmcnt(0)')
        for r in regs[1:]: a(f'v_min_u32 v{regs[0]}, v{regs[0]}, v{r}')
        a(f'''v_cmp_eq_u32 vcc, 0, v{regs[0]}
        s_cmp_eq_u64 vcc, 0
        s_cbranch_scc1 {l}d
        s_sleep 1
        s_add_u32 s82, s82, 1
        s_cmp_lt_u32 s82, 0x40000
        s_cbranch_scc1 {l}''')
        a.label(l + 'd')
    def flag(self, soff, vt):
        self.a(f'''v_mov_b32 v{vt}, 1
        s_mov_b64 exec, 1
        buffer_store_dword v{vt}, off, s[16:19], s{soff}{SC1}
        s_mov_b64 exec, -1''')

slots = ['X', 'K0', 'K1', 'V0', 'K2', 'V1', 'V2', 'K3', 'V3', 'X']
kvafter = {1: ('K', 0), 2: ('K', 1), 3: ('V', 0), 4: ('K', 2), 5: ('V', 1), 6: ('V', 2)}
def soff(sl): return XREG if sl == 'X' else int(sl[1])*16384 + (65536 if sl[0] == 'V' else 0)
def wqdma(c):
    L = [f's_add_u32 m0, s31, {soff(slots[c])}']
    for p in range(4):
        L.append(f's_mov_b32 s43, {c*64*8192 + (p>>1)*65536 + (p&1)*128 - p*1024 + 4096}')
        L.append(f'buffer_load_dwordx4 v{DQ}, s[12:15], s43 offen offset:{p*1024} lds')
    return L
def take(L):
    o = []
    while L and L[0].startswith('s_'): o.append(L.pop(0))
    if L: o.append(L.pop(0))
    return o

def p0(g):
    a = g.a; opt = g.opt
    a(f'''s_cmp_ge_u32 s2, 256
    s_cbranch_scc1 {g.L('end')}''')
    g.stamp(0)
    a(f'''s_load_dwordx16 s[44:59], s[0:1], 0
    s_load_dwordx8 s[60:67], s[0:1], 64
    s_load_dwordx4 s[68:71], s[0:1], 96
    s_getpc_b64 s[92:93]
    {g.L('pc')}:
    s_mov_b32 s94, {g.L('end')}-{g.L('pc')}
    s_mov_b32 s95, 0x20000
    s_bfe_u32 s3, s2, 0x10003
    s_lshl_b32 s3, s3, 15
    v_lshl_add_u32 v8, v0, 7, s3
    buffer_load_dword a{ADUM}, v8, s[92:95], 0 offen
    v_lshrrev_b32 v1, 6, v0
    v_mov_b32 v7, v0
    v_and_b32 v0, 63, v0
    v_readfirstlane_b32 s28, v1
    s_and_b32 s83, s2, 7
    s_bfe_u32 s84, s2, 0x20003
    s_lshr_b32 s85, s2, 5
    s_lshl_b32 s29, s83, 2
    s_add_u32 s29, s29, s84
    s_lshl_b32 s3, s85, 2
    s_add_u32 s30, s3, s28
    s_lshr_b32 s72, s83, 1
    s_add_u32 s72, s72, s3
    s_and_b32 s73, s83, 1
    s_lshl_b32 s73, s73, 2
    s_add_u32 s73, s73, s84
    s_lshl_b32 s74, s84, 3
    s_add_u32 s74, s74, s83
    s_lshl_b32 s31, s28, 12
    v_lshlrev_b32 v{LN16}, 4, v0
    v_lshrrev_b32 v1, 5, v0
    v_bfe_u32 v2, v0, 2, 3
    v_and_b32 v3, 3, v0
    v_lshlrev_b32 v4, 4, v3
    v_lshl_add_u32 v4, v1, 6, v4
    v_lshl_add_u32 v{DQ}, v2, 13, v4
    s_lshl_b32 s3, s28, 17
    v_add_u32 v{DQ}, s3, v{DQ}
    v_lshrrev_b32 v5, 2, v2
    v_lshlrev_b32 v5, 5, v5
    v_xor_b32 v4, v5, v4
    v_lshl_add_u32 v{DK}, v2, 8, v4
    v_add_u32 v{DK}, s31, v{DK}
    v_lshrrev_b32 v4, 4, v0
    v_and_b32 v2, 15, v0
    s_mov_b32 s86, 0
    s_lshl_b32 s3, s29, 8
    s_waitcnt lgkmcnt(0)''')
    srd(a, 16, PWS, PWS+1, WS_BYTES)
    a(f'''s_add_u32 s12, s{PWQ}, s3
    s_addc_u32 s13, s{PWQ+1}, 0
    s_sub_u32 s12, s12, 4096
    s_subb_u32 s13, s13, 0
    s_sub_u32 s14, {640*8192 + 4096}, s3
    s_mov_b32 s15, 0x20000''')
    srd(a, 24, PDBG, PDBG+1, 256)
    a(f'''s_cmp_ge_u32 s2, 136
    s_cbranch_scc1 {g.L('gemv')}
    s_cmp_ge_u32 s2, 8
    s_cbranch_scc1 {g.L('ln')}
    s_cmp_lg_u32 s2, 0
    s_cbranch_scc1 {g.L('idle')}''')
    g.cut('p0')
    NE = opt.get('ne', 2)
    early = sum([wqdma(c) for c in range(NE)], [])
    a(f'v_lshlrev_b32 v8, 4, v7\ns_mov_b32 s32, {FLG}')
    for i in range(4): a(f'v_mov_b32 v{12+i}, 0')
    for i in range(7): a(f'buffer_store_dwordx4 v[12:15], v8, s[16:19], s32 offen{SC1}\ns_add_u32 s32, s32, 4096')
    a(f'''s_waitcnt vmcnt(0)
    s_barrier
    v_mov_b32 v9, 1
    s_mov_b64 exec, 1
    buffer_store_dword v9, off, s[24:27], 0{SC1}
    s_mov_b64 exec, -1''')
    g.cut('zero')
    a.label(g.L('idle'))
    for l in early: a(l)
    a(f's_branch {g.L("p1done")}')
    g.cut('idle')
    a.label(g.L('gemv'))
    a(f'''s_sub_u32 s32, s2, 136
    v_lshrrev_b32 v8, 2, v7
    v_mul_u32_u24 v9, 20, v8
    v_mul_u32_u24 v8, 76800, v8
    v_lshl_add_u32 v8, v3, 4, v8
    s_lshl_b32 s33, s32, 6''')
    srd(a, 4, PC, PC+1, 1280); srd(a, 20, PWM, PWM+1, 640*7680)
    a('buffer_load_dwordx4 v[12:15], v9, s[4:7], 0 offen ; t=c\nbuffer_load_dword v16, v9, s[4:7], 0 offen offset:16 ; t=c')
    for i in range(10): a(f'buffer_load_dwordx4 {vr(40+4*i,4)}, v8, s[20:23], s33 offen ; t=w{i}\ns_add_u32 s33, s33, 7680')
    for l in early: a(l)
    a('WAITVM c')
    for i in range(5): a(f'v_lshlrev_b32 v{20+2*i}, 16, v{12+i}\nv_and_b32 v{21+2*i}, 0xffff0000, v{12+i}')
    for i in range(10): a(f'v_mul_f32 v{30+i}, 0xbfb8aa3b, v{20+i}')
    for i in range(10): a(f'v_exp_f32 v{30+i}, v{30+i}')
    for i in range(10): a(f'v_add_f32 v{30+i}, 1.0, v{30+i}')
    for i in range(10): a(f'v_rcp_f32 v{30+i}, v{30+i}')
    for i in range(10): a(f'v_mul_f32 v{20+i}, v{20+i}, v{30+i}')
    for i in range(5): a(f'v_cvt_pk_bf16_f32 v{12+i}, v{20+2*i}, v{21+2*i}')
    for i in range(5): a(f'v_lshlrev_b32 v{20+2*i}, 16, v{12+i}\nv_and_b32 v{21+2*i}, 0xffff0000, v{12+i}')
    a('s_mov_b32 s34, 0xffff0000')
    for i in range(10):
        a(f'WAITVM w{i}')
        for j in range(4): a(f'v_lshlrev_b32 v{30+2*j}, 16, v{40+4*i+j}\nv_and_b32 v{31+2*j}, s34, v{40+4*i+j}')
        sel = 'op_sel:[0,1,0] op_sel_hi:[1,1,1]' if i & 1 else 'op_sel:[0,0,0] op_sel_hi:[1,0,1]'
        sel2 = 'op_sel:[0,0] op_sel_hi:[1,0]'
        for j in range(4):
            if i == 0: a(f'v_pk_mul_f32 {vr(80+2*j,2)}, {vr(30+2*j,2)}, v[20:21] {sel2}')
            else: a(f'v_pk_fma_f32 {vr(80+2*j,2)}, {vr(30+2*j,2)}, {vr(20+(i&~1),2)}, {vr(80+2*j,2)} {sel}')
    a(f'''v_lshrrev_b32 v8, 4, v7
    v_lshlrev_b32 v8, 7, v8
    v_lshl_add_u32 v8, v3, 5, v8
    v_add_u32 v8, {SCR}, v8''')
    for ror in (4, 8):
        for j in range(8): a(f'v_add_f32 v{80+j}, v{80+j}, v{80+j} row_ror:{ror}')
    a(f'''ds_write_b128 v8, v[80:83]
    ds_write_b128 v8, v[84:87] offset:16
    v_and_b32 v9, 31, v0
    v_lshlrev_b32 v10, 2, v9
    v_lshl_add_u32 v8, v1, 10, v10
    v_add_u32 v8, {SCR}, v8
    s_waitcnt lgkmcnt(0)
    s_barrier
    s_cmp_lg_u32 s28, 0
    s_cbranch_scc1 {g.L('p1done')}''')
    g.cut('gemv')
    for i in range(4): a(f'ds_read2_b32 v[{12+2*i}:{13+2*i}], v8 offset0:{64*i} offset1:{64*i+32}')
    a(f'''s_mul_i32 s35, s32, 3277
    s_lshr_b32 s35, s35, 16
    s_mul_i32 s36, s35, 20
    s_sub_u32 s36, s32, s36
    s_cmp_eq_u32 s35, 1
    s_cselect_b32 s34, 1.0, 0
    s_cmp_eq_u32 s35, 4
    s_cselect_b32 s34, 1.0, s34
    s_lshl_b32 s37, s36, 8
    s_lshl_b32 s38, s35, 5
    s_sub_u32 s37, s37, s38
    s_add_u32 s37, s37, {MODA + 32}
    s_lshl_b32 s38, s32, 7
    s_add_u32 s38, s38, {MOD}
    s_lshl_b32 s39, s32, 6
    s_add_u32 s39, s39, {MODH}
    s_lshl_b32 s86, s32, 2
    s_add_u32 s86, s86, {FLG + FM}
    v_lshrrev_b32 v11, 3, v9
    v_lshl_add_u32 v11, v11, 5, v10
    v_lshlrev_b32 v9, 1, v9
    s_waitcnt lgkmcnt(0)
    v_pk_add_f32 v[12:13], v[12:13], v[14:15]
    v_pk_add_f32 v[16:17], v[16:17], v[18:19]
    v_pk_add_f32 v[12:13], v[12:13], v[16:17]
    v_add_f32 v12, v12, v13
    v_mov_b32 v13, v12
    s_nop 1
    v_permlane32_swap_b32 v12, v13
    s_nop 1
    v_add_f32 v12, v12, v13
    v_cvt_pk_bf16_f32 v12, v12, v12
    v_lshlrev_b32 v12, 16, v12
    v_add_f32 v12, s34, v12
    v_cvt_pk_bf16_f32 v13, v12, v12
    v_lshlrev_b32 v12, 16, v13
    v_mul_f32 v14, {hex(f2u(SC))}, v12
    s_mov_b32 exec_hi, 0
    s_cmp_ge_u32 s35, 2
    s_cbranch_scc1 {g.L('gemv2')}
    buffer_store_dword v14, v11, s[16:19], s37 offen{SC1}
    s_mov_b64 exec, -1
    s_branch {g.L('p1done')}
    {g.L('gemv2')}:
    buffer_store_dword v12, v10, s[16:19], s38 offen{SC1}
    buffer_store_short v13, v9, s[16:19], s39 offen{SC1}
    s_mov_b64 exec, -1
    s_branch {g.L('p1done')}''')
    g.cut('gemvw0')
    a.label(g.L('ln'))
    a(f'''s_sub_u32 s32, s2, 8
    v_mul_u32_u24 v8, 1280, v2
    v_lshl_add_u32 v8, v4, 4, v8
    s_mul_i32 s33, s32, 20480
    s_mul_i32 s34, s28, 320
    s_add_u32 s33, s33, s34''')
    srd(a, 20, PX, PX+1, 2048*1280)
    for i in range(5): a(f'buffer_load_dwordx4 {vr(12+4*i,4)}, v8, s[20:23], s33 offen offset:{64*i} ; t=x{i}')
    for l in early: a(l)
    a(f'''v_lshlrev_b32 v9, 5, v2
    v_add_u32 v9, {SCR}, v9
    s_lshl_b32 s34, s28, 3
    v_add_u32 v10, s34, v9
    s_lshr_b32 s35, s32, 2
    s_and_b32 s36, s32, 3
    s_mul_i32 s37, s35, 20
    s_mul_i32 s38, s28, 5
    s_add_u32 s37, s37, s38
    s_lshl_b32 s37, s37, 2
    s_add_u32 s37, s37, s36
    s_lshl_b32 s37, s37, 10
    s_lshl_b32 s86, s35, 5
    s_lshl_b32 s36, s36, 2
    s_add_u32 s86, s86, s36
    s_add_u32 s86, s86, s28
    s_lshl_b32 s86, s86, 2
    s_add_u32 s86, s86, {FLG + FX}
    s_mov_b32 s34, 0xffff0000
    s_mov_b32 s38, {hex(f2u(1/160))}
    s_mov_b32 s39, {hex(f2u(1/640))}''')
    for i in range(5):
        a(f'WAITVM x{i}')
        for j in range(4): a(f'v_lshlrev_b32 v{32+8*i+2*j}, 16, v{12+4*i+j}\nv_and_b32 v{33+8*i+2*j}, s34, v{12+4*i+j}')
        for j in range(4):
            k = 4*i + j
            if k == 1: a('v_pk_add_f32 v[72:73], v[32:33], v[34:35]')
            if k > 1: a(f'v_pk_add_f32 v[72:73], v[72:73], {vr(32+2*k,2)}')
    a('v_add_f32 v72, v72, v73')
    xsum(a, 72, 73)
    a(f'v_mul_f32 v74, {hex(f2u(-1/160))}, v72')
    for k in range(20): a(f'v_pk_add_f32 {vr(32+2*k,2)}, {vr(32+2*k,2)}, v[74:75] op_sel_hi:[1,0]')
    a('v_pk_mul_f32 v[76:77], v[32:33], v[32:33]\nv_pk_mul_f32 v[78:79], v[34:35], v[34:35]')
    for k in range(2, 20): a(f'v_pk_fma_f32 {vr(76+2*(k&1),2)}, {vr(32+2*k,2)}, {vr(32+2*k,2)}, {vr(76+2*(k&1),2)}')
    a('v_pk_add_f32 v[76:77], v[76:77], v[78:79]\nv_add_f32 v73, v76, v77')
    xsum(a, 73, 76)
    a(f'''ds_write_b64 v10, v[72:73]
    s_waitcnt lgkmcnt(0)
    s_barrier
    ds_read_b128 v[80:83], v9
    ds_read_b128 v[84:87], v9 offset:16
    v_mov_b32 v79, {hex(f2u(1e-5))}
    s_waitcnt lgkmcnt(0)
    v_pk_add_f32 v[76:77], v[80:81], v[82:83]
    v_pk_add_f32 v[88:89], v[84:85], v[86:87]
    v_pk_add_f32 v[76:77], v[76:77], v[88:89]
    v_mul_f32 v76, {hex(f2u(-1/640))}, v76
    v_fma_f32 v80, v80, s38, v76
    v_fma_f32 v82, v82, s38, v76
    v_fma_f32 v84, v84, s38, v76
    v_fma_f32 v86, v86, s38, v76
    v_mul_f32 v80, v80, v80
    v_fmac_f32 v80, v82, v82
    v_fmac_f32 v80, v84, v84
    v_fmac_f32 v80, v86, v86
    v_fmac_f32 v77, {hex(f2u(160.0))}, v80
    v_fma_f32 v77, v77, s39, v79
    v_rsq_f32 v78, v77
    v_sub_f32 v76, v76, v74
    v_mul_f32 v79, v76, v78''')
    for i in range(5):
        for j in range(4): a(f'v_pk_fma_f32 {vr(32+8*i+2*j,2)}, {vr(32+8*i+2*j,2)}, v[78:79], v[78:79] op_sel:[0,0,1] op_sel_hi:[1,0,1]')
        for j in range(4): a(f'v_cvt_pk_f16_f32 v{12+4*i+j}, v{32+8*i+2*j}, v{33+8*i+2*j}')
        a(f'buffer_store_dwordx4 {vr(12+4*i,4)}, v{LN16}, s[16:19], s37 offen{SC1}\ns_add_u32 s37, s37, 4096')
    g.cut('ln')
    a.label(g.L('p1done'))
    g.stamp(1)
    g.poll([f'buffer_load_dword v9, off, s[24:27], 0{SC1}'], [9])
    a(f's_cmp_eq_u32 s86, 0\ns_cbranch_scc1 {g.L("noflag")}')
    g.cut('go')
    g.flag(86, 9)
    g.cut('flag1')
    a.label(g.L('noflag'))
    g.stamp(2)
    a(f'''s_lshl_b32 s3, s29, 19
    s_add_u32 s4, s{PK}, s3
    s_addc_u32 s5, s{PK+1}, 0
    s_sub_u32 s4, s4, 1024
    s_subb_u32 s5, s5, 0
    s_mov_b32 s6, {524288+1024}
    s_mov_b32 s7, 0x20000
    s_add_u32 s8, s{PV_}, s3
    s_addc_u32 s9, s{PV_+1}, 0
    s_sub_u32 s8, s8, 1024
    s_subb_u32 s9, s9, 0
    s_mov_b32 s10, {524288+1024}
    s_mov_b32 s11, 0x20000''')
    for c in range(NE, 9):
        for l in wqdma(c): a(l)
    if opt.get('warm', 1):
        a(f'''s_mul_i32 s43, s85, 6144
        s_add_u32 s43, s43, 1024
        v_lshlrev_b32 v12, 7, v0
        s_bitcmp0_b32 s28, 0
        s_cselect_b32 s20, s4, s8
        s_cselect_b32 s21, s5, s9
        s_mov_b32 s22, s6
        s_mov_b32 s23, 0x20000
        buffer_load_dword a{ADUM}, v12, s[20:23], s43 offen''')
    srd(a, 20, PWO, PWO+1, 4096*1280); srd(a, 24, PWD, PWD+1, 1728*1280)
    a(f'''s_mov_b32 s38, 0
    v_bfe_u32 v5, v0, 1, 3
    v_and_b32 v6, 1, v0
    v_lshlrev_b32 v6, 4, v6
    v_lshl_add_u32 v6, v4, 5, v6
    v_lshl_add_u32 v{DV}, v5, 8, v6
    v_add_u32 v{DV}, s31, v{DV}
    v_bfe_u32 v5, v0, 3, 1
    v_and_b32 v6, 7, v0
    v_bfe_u32 v7, v0, 2, 1
    v_lshlrev_b32 v7, 1, v7
    v_xor_b32 v7, v7, v4
    v_lshlrev_b32 v7, 4, v7
    v_lshl_add_u32 v7, v6, 6, v7
    v_lshl_add_u32 v{VKB}, v5, 11, v7
    v_and_b32 v5, 31, v0
    v_lshlrev_b32 v5, 3, v5
    v_lshl_add_u32 v5, v1, 11, v5
    v_add_u32 v{VVB}, 0x10000, v5
    v_lshlrev_b32 v5, 4, v2
    v_lshl_add_u32 v{QAB}, v4, 11, v5
    v_add_u32 v{QA}, {soff(slots[0])}, v{QAB}
    v_lshlrev_b32 v5, 6, v4
    v_add_u32 v{MA}, {MODL}, v5
    v_mov_b32 v5, 0
    v_mov_b32 v6, {FLAG}
    ds_write_b32 v6, v5
    s_lshl_b32 s3, s30, 7
    s_add_u32 s3, s3, {FX}
    v_lshl_add_u32 v5, v2, 2, s3
    v_lshlrev_b32 v6, 2, v0
    v_add_u32 v6, {FM}, v6
    v_cmp_gt_u32 vcc, 40, v0
    s_mov_b32 s41, {FLG}
    s_mul_i32 s40, s30, {20*4096}
    v_cndmask_b32 v5, v5, v6, vcc''')
    for i in range(4): a(f'v_accvgpr_write_b32 a{AZ+i}, 0')
    g.poll([f'buffer_load_dword v9, v5, s[16:19], s41 offen{SC1}'], [9])
    g.stamp(3)
    g.cut('p1wait')

def Or(qb, db): return vr(O0 + (qb*8+db)*4, 4)
def sm_ops(e, par):
    kb, qb, i = e >> 4, (e >> 2) & 3, e & 3
    return S0 + par*32 + qb*8 + kb*4 + i, qb, P0 + par*16 + qb*4 + kb*2 + (i >> 1)
def kread(f, half, T):
    kb, s = f >> 2, f & 3
    return f'ds_read_b128 {ar(AK+f*4,4)}, v{VK} offset:{(half*2+kb)*4096 + s*512} ; t=f{f} ; use=K{T%4}:' + (f'K{T}' if T < 32 else '*')
def vread(db, u, half, T):
    return f'ds_read_b64_tr_b16 {ar(AV+db*4+u*2,2)}, v{VV} offset:{half*8192 + u*4096 + db*256} ; t=f{8+db} ; use=V{T%4}:V{T}'
def kvdma(which, p, T):
    v, s = (DK, 4) if which == 'K' else (DV, 8)
    return f'buffer_load_dwordx4 v{v}, s[{s}:{s+3}], s{32 + (p & 1)} offen offset:{p*1024} lds ; t={which}{T} ; dma={which}{T%4}:{which}{T}'

def step(j, opt):
    par = j & 1; T = j >> 1
    out = []
    dpos = opt.get('dpos', (1, 2, 3, 4))
    for f in range(16):
        M = []
        for qb in range(4):
            if f < 8:
                kb, s = f >> 2, f & 3
                d = vr(S0 + (1-par)*32 + qb*8 + kb*4, 4)
                c = vr(NEG + qb*4, 4) if s == 0 else d
                M.append(f'{MF} {d}, {ar(AK+f*4,4)}, {ar(AQ+(qb*4+s)*4,4)}, {c}')
            else:
                M.append(f'{MF} {Or(qb,f-8)}, {ar(AV+(f-8)*4,4)}, {vr(P0+par*16+qb*4,4)}, {Or(qb,f-8)}')
        fr = f + PD
        if fr < 8: R = [kread(fr, (j+1) & 1, (j+1) >> 1)]
        elif fr < 16: R = [vread(fr-8, u, par, T) for u in range(2)]
        else: R = [kread(fr-16, j & 1, (j+2) >> 1)]
        if f in dpos: R.append(kvdma('K' if par == 0 else 'V', dpos.index(f), T+3))
        S = [[], [], [], []]; X = []
        if par == 0:
            if f == 0:
                S[0] = ['s_waitcnt vmcnt(12)', 's_barrier']
                S[2] = ['s_add_u32 m0, s37, s31']
            if f == 6: S[0] = ['s_add_u32 s35, s35, 16384']; S[2] = ['s_and_b32 s35, s35, 0xffff']
            if f == 13: pass
            if f == 7: X = [f'v_add_u32 v{VK}, s35, v{VKB}']
            if f == 14: S[0] = ['s_cmp_eq_u32 s34, 31']
        else:
            assert max(dpos) < 8
            if f == 0: S[0] = ['s_add_u32 s39, s37, 65536']; S[2] = ['s_add_u32 m0, s39, s31']
            if f == 14: X = [f'v_add_u32 v{VV}, s35, v{VVB}']
            if f == 8: S[0] = ['s_add_u32 s37, s37, 16384']; S[2] = ['s_and_b32 s37, s37, 0xffff']
            if f == 9: S[0] = ['s_add_u32 s34, s34, 1']; S[2] = ['s_cmp_ge_u32 s34, 29']
            if f == 10: S[0] = ['s_cselect_b32 s6, 0, s6']; S[2] = ['s_cselect_b32 s10, 0, s10']
            if f == 11: S[0] = ['s_add_u32 s32, s32, 16384']; S[2] = ['s_add_u32 s33, s33, 16384']
            if f == 12: S[0] = ['s_bitcmp1_b32 s81, s34']
        E = []; A = []; C = []
        for k in range(2):
            e = 2*(f - G0) + k
            r, qb, p = sm_ops(e % 32, (1-par) if e >= 0 else par)
            E.append(f'v_exp_f32 v{r}, v{r}')
            e -= 2
            r, qb, p = sm_ops(e % 32, (1-par) if e >= 0 else par)
            A.append(f'v_add_f32 v{L0+qb}, v{L0+qb}, v{r}')
            if k == 1: C.append(f'v_cvt_pk_bf16_f32 v{p}, v{r-1}, v{r}')
        W = [f'WAITLG! f{(f+1)%16}']
        out += [M[0]] + S[0][:1] + [E[0]] + S[0][1:] + [M[1]] + R + [A[0]] + X + [M[2]] + S[2][:1] + [E[1]] + S[2][1:] + [M[3]] + W + [A[1]] + C
    return ['    ' + x for x in out]

TS_SIDE, TS_SIG, TS_CHK = 2, 5, 27
def p2(g):
    a = g.a; opt = g.opt; QD = opt.get('qd', 3)
    def xnld(ks):
        return [f'buffer_load_dwordx4 {vr(XR[ks%5]+qb*4,4)}, v{LN16}, s[16:19], s40 offen offset:{qb*1024}{SC1} ; t=x{ks}' for qb in range(4)] + ['s_add_u32 s40, s40, 4096']
    a(f'''s_lshl_b32 s41, s28, 10
    s_add_u32 m0, s41, {MODL}
    s_add_u32 s42, s41, {MODA}
    buffer_load_dwordx4 v{LN16}, s[16:19], s42 offen{SC1} lds
    s_mov_b32 m0, {MODL+4096}
    s_mov_b32 s42, {MODA+4096}
    buffer_load_dwordx4 v{LN16}, s[16:19], s42 offen{SC1} lds''')
    for ks in range(5):
        for l in xnld(ks): a(l)
    def modrd(ks): return [f'ds_read_b128 {vr(MB[ks%2]+4*i,4)}, v{MA} offset:{ks*256 + 16*i}' for i in range(4)]
    def modul(ks, gi):
        qb = gi >> 1; mix = []; cv = []
        for k in range(2):
            jj = 2*(gi & 1) + k; x = XR[ks%5] + qb*4 + jj; m = MB[ks%2]
            mix.append(f'v_fma_mix_f32 v{T4+2*k}, v{x}, v{m+2*jj}, v{m+8+2*jj} op_sel_hi:[1,0,0]')
            mix.append(f'v_fma_mix_f32 v{T4+2*k+1}, v{x}, v{m+2*jj+1}, v{m+8+2*jj+1} op_sel:[1,0,0] op_sel_hi:[1,0,0]')
            cv.append(f'v_cvt_pk_bf16_f32 v{x}, v{T4+2*k}, v{T4+2*k+1}')
        return mix, cv
    def wread(G):
        ks, nt = G >> 3, G & 7; c = ks >> 1
        return [f'ds_read_b64_tr_b16 {ar(AK+(G%16)*4+v*2,2)}, v{QA} offset:{(ks&1)*8192 + (nt>>1)*512 + v*256 + (nt&1)*8}' for v in range(2)]
    a('WAITVM mod\ns_waitcnt lgkmcnt(0)\ns_barrier')
    for l in modrd(0) + modrd(1): a(l)
    for G in range(QD):
        for l in wread(G): a(l)
    a('WAITVM x0\nWAITLG m0')
    g.stamp(4)
    for gi in range(8):
        mix, cv = modul(0, gi)
        for l in mix + cv: a(l)
    a('WAITLG w0')
    for ks in range(20):
        c = ks >> 1
        mem = []
        if 1 <= ks <= 15: mem += xnld(ks + 4)
        if ks + 2 < 20: mem += modrd(ks + 2)
        dm = []
        if ks & 1:
            if c == 1: dm += wqdma(9)
            if c - 1 in kvafter:
                w, T = kvafter[c - 1]
                dm += [f's_mov_b32 s32, {T*16384 + 1024}', f's_mov_b32 s33, {T*16384 + 128}', f's_add_u32 m0, s31, {soff(w+str(T))}', 's_nop 0'] + [kvdma(w, p, T) for p in range(4)]
        for nt in range(8):
            G = ks*8 + nt
            M = []
            for qb in range(4):
                d = Or(qb, nt)
                M.append(f'{MF} {d}, {ar(AK+(G%16)*4,4)}, {vr(XR[ks%5]+qb*4,4)}, {d if ks else 0}')
            R = wread(G + QD) if G + QD < 160 else []
            pre = []
            if (G + QD) % 16 == 0 and 32 <= G + QD < 160:
                pre = ['s_barrier']
                if (G + QD) >> 4 == 9: pre = ['WAITVM c9,K0', 's_barrier']
            X = []
            if (G + QD + 1) % 16 == 0 and G + QD + 1 < 160: X = [f'v_add_u32 v{QA}, {soff(slots[(G+QD+1)>>4])}, v{QAB}']
            mix, cv = modul(ks + 1, nt) if ks < 19 else ([], [])
            w1 = [f'WAITVM x{ks+1}', f'WAITLG m{ks+1}'] if nt == 0 and ks < 19 else []
            m1 = take(mem)
            m2 = take(dm) if nt >= 8 - QD else []
            if nt == 7: m2 += take(dm)
            W = [f'WAITLG w{G+1}'] if G + 1 < 160 else []
            for l in [M[0]] + pre + R + [M[1]] + w1 + m1 + mix[:2] + [M[2]] + m2 + mix[2:] + [M[3]] + W + cv + X: a(l)
        for l in mem + dm: a(l)
    a('s_barrier')
    g.stamp(5)
    a(f'''s_lshr_b32 s75, s2, 1
    s_and_b32 s76, s2, 1
    s_lshl_b32 s76, s76, 2
    s_add_u32 s76, s76, s28
    s_mul_i32 s42, s75, {32*1280}
    s_mul_i32 s43, s76, 160
    s_add_u32 s42, s42, s43
    s_mul_i32 s77, s28, 5120
    s_add_u32 m0, s77, {XREG}
    s_mov_b32 s41, 1120
    v_lshrrev_b32 v{QA}, 4, v{LN16}''')
    for p in range(5):
        r = NEG + p
        a(f'''v_add_u32 v{r}, {64*p}, v{QA}
        v_mul_u32_u24 v{r}, 6554, v{r}
        v_lshrrev_b32 v{r}, 16, v{r}
        v_mad_u32_u24 v{r}, v{r}, s41, v{LN16}''')
    for p in range(4): a(f'buffer_load_dwordx4 v{NEG+p}, s[20:23], s42 offen offset:{p*1024} lds ; dma=X+M:wo!')
    a(f's_add_u32 m0, s77, {XREG+4096}\ns_add_u32 s42, s42, 4096\nbuffer_load_dwordx4 v{NEG+4}, s[20:23], s42 offen lds ; dma=X:wo!')
    a(f'''s_lshl_b32 s78, s2, 1
    s_add_u32 s78, s78, s28
    s_cmp_lt_u32 s28, 2
    s_cselect_b32 s78, s78, 512
    s_lshr_b32 s79, s78, 3
    s_and_b32 s80, s78, 7
    s_mov_b32 s81, {(1 << TS_SIDE) | (1 << TS_SIG) | (1 << TS_CHK)}
    s_cmp_ge_u32 s78, 432
    s_cbranch_scc1 {g.L('nowd')}''')
    g.cut('qproj')
    a(f'''s_mul_i32 s42, s79, {32*1280}
    s_mul_i32 s43, s80, 160
    s_add_u32 m0, s77, {XREG+20480}
    s_add_u32 s42, s42, s43''')
    for p in range(4): a(f'buffer_load_dwordx4 v{NEG+p}, s[24:27], s42 offen offset:{p*1024} lds ; dma=XD:wd!')
    a(f's_add_u32 m0, s77, {XREG+20480+4096}\ns_add_u32 s42, s42, 4096\nbuffer_load_dwordx4 v{NEG+4}, s[24:27], s42 offen lds ; dma=XD:wd!')
    g.cut('wd1')
    a.label(g.L('nowd'))
    for qb in range(4):
        for B in range(4):
            for k in range(4):
                o = O0 + (qb*8 + 2*B)*4 + 2*k
                a(f'v_cvt_pk_bf16_f32 v{T4+k}, v{o}, v{o+1}')
            for k in range(4): a(f'v_accvgpr_write_b32 a{AQ+(qb*4+B)*4+k}, v{T4+k}')
    g.cut('qcvt')
    a.label(g.L('start'))
    a(f'''v_mov_b32 v{VK}, v{VKB}
    v_mov_b32 v{VV}, v{VVB}
    s_mov_b32 s34, 0
    s_mov_b32 s35, 0
    s_mov_b32 s37, {3*16384}
    s_mov_b32 s32, {3*16384 + 1024}
    s_mov_b32 s33, {3*16384 + 128}''')
    for f in range(8): a(kread(f, 0, 0))
    for i in range(8): a(f'v_mfma_f32_32x32x16_bf16 {vr(O0+16*i,16)}, {ar(AZ,4)}, {ar(AZ,4)}, 0')
    for i in range(4): a(f'v_mov_b32 v{L0+i}, 0')
    for f in range(8):
        kb, s = f >> 2, f & 3
        a(f'WAITLG f{f}')
        for qb in range(4):
            d = vr(S0 + qb*8 + kb*4, 4)
            a(f'{MF} {d}, {ar(AK+f*4,4)}, {ar(AQ+(qb*4+s)*4,4)}, {d if s else 0}')
        if f < PD: a(kread(f, 1, 0))
    a(f's_nop 5\ns_cmp_lg_u32 s38, 0\ns_cbranch_scc1 {g.L("havemax")}')
    g.cut('st1')
    for qb in range(4):
        r = S0 + qb*8; m = NEG + qb*4
        a(f'''v_max3_f32 v{m}, v{r}, v{r+1}, v{r+2}
        v_max3_f32 v{m+1}, v{r+3}, v{r+4}, v{r+5}
        v_max3_f32 v{m}, v{m}, v{r+6}, v{r+7}
        v_max_f32 v{m}, v{m}, v{m+1}''')
    for sw in ('v_permlane16_swap_b32', 'v_permlane32_swap_b32'):
        for qb in range(4): a(f'v_mov_b32 v{NEG+qb*4+1}, v{NEG+qb*4}')
        for qb in range(4): a(f'{sw} v{NEG+qb*4}, v{NEG+qb*4+1}')
        for qb in range(4): a(f'v_max_f32 v{NEG+qb*4}, v{NEG+qb*4}, v{NEG+qb*4+1}')
    for qb in range(4): a(f'v_sub_f32 v{NEG+qb*4}, {hex(f2u(-SHIFT))}, v{NEG+qb*4}')
    for qb in range(4):
        for k in range(1, 4): a(f'v_mov_b32 v{NEG+qb*4+k}, v{NEG+qb*4}')
    g.cut('st2')
    a.label(g.L('havemax'))
    for e in range(0, 32, 2):
        r, qb, p = sm_ops(e, 0)
        a(f'v_pk_add_f32 {vr(r,2)}, {vr(r,2)}, {vr(NEG+qb*4,2)}')
    n0 = 2*(16 - G0)
    if opt.get('stamp'):
        g.stamp(6)
        for f in range(PD): a(kread(f, 1, 0))
    for e in range(n0):
        r, qb, p = sm_ops(e, 0)
        a(f'v_exp_f32 v{r}, v{r}')
    for e in range(n0 - 2):
        r, qb, p = sm_ops(e, 0)
        a(f'v_add_f32 v{L0+qb}, v{L0+qb}, v{r}')
        if e & 1: a(f'v_cvt_pk_bf16_f32 v{p}, v{r-1}, v{r}')
    a('WAITLG f0')
    g.cut('st3')
    g.cut('LOOP')
    a(f's_cmp_eq_u32 s34, {TS_SIG}\ns_cbranch_scc1 {g.L("sig")}\ns_cmp_eq_u32 s34, {TS_CHK}\ns_cbranch_scc1 {g.L("chk")}')
    g.cut('spec')
    a(f'''v_lshrrev_b32 v{QA}, 6, v{LN16}
    v_mul_u32_u24 v{QA}, 160, v{QA}
    v_bfe_u32 v{QAB}, v{LN16}, 4, 2
    v_mad_u32_u24 v{QA}, v{QAB}, 40, v{QA}
    s_add_u32 s41, s77, {XREG}
    v_add_u32 v{QA}, s41, v{QA}
    s_waitcnt vmcnt(16)''')
    for j in range(5):
        for v in range(2): a(f'ds_read_b64_tr_b16 {ar(ASJ+4*j+2*v,2)}, v{QA} offset:{v*2560+8*j} ; use=X:wo!')
    a(f'''s_lshl_b32 s42, s76, 7
    s_add_u32 s42, s42, s75
    s_mul_i32 s42, s42, 5120
    s_add_u32 s42, s42, {WOF}
    s_add_u32 s43, s42, 4096
    s_waitcnt lgkmcnt(0)''')
    for j in range(5): a(f'buffer_store_dwordx4 {ar(ASJ+4*j,4)}, v{LN16}, s[16:19], s{42 if j < 4 else 43} offen offset:{(j%4)*1024}{SC1}')
    a(f's_cmp_ge_u32 s78, 432\ns_cbranch_scc1 {g.L("loop")}')
    g.cut('side')
    for j in range(5):
        for v in range(2): a(f'ds_read_b64_tr_b16 {ar(ASJ+20+4*j+2*v,2)}, v{QA} offset:{20480+v*2560+8*j} ; use=XD:wd!')
    a(f'''s_mul_i32 s42, s80, 54
    s_add_u32 s42, s42, s79
    s_mul_i32 s42, s42, 5120
    s_add_u32 s42, s42, {WDF}
    s_add_u32 s43, s42, 4096
    s_waitcnt lgkmcnt(0)''')
    for j in range(5): a(f'buffer_store_dwordx4 {ar(ASJ+20+4*j,4)}, v{LN16}, s[16:19], s{42 if j < 4 else 43} offen offset:{(j%4)*1024}{SC1}')
    a(f's_branch {g.L("loop")}')
    g.cut('sidewd')
    a.label(g.L('sig'))
    a(f'''s_waitcnt vmcnt(24)
    s_lshl_b32 s42, s76, 7
    s_add_u32 s42, s42, s75
    s_lshl_b32 s42, s42, 2
    s_add_u32 s42, s42, {FLG + FW}''')
    g.flag(42, QA)
    a(f's_cmp_ge_u32 s78, 432\ns_cbranch_scc1 {g.L("loop")}')
    g.cut('sig')
    a(f'''s_lshl_b32 s42, s80, 6
    s_add_u32 s42, s42, s79
    s_lshl_b32 s42, s42, 2
    s_add_u32 s42, s42, {FLG + FD}''')
    g.flag(42, QA)
    a(f's_branch {g.L("loop")}')
    g.cut('sigwd')
    a.label(g.L('chk'))
    a(f'''s_lshl_b32 s42, s28, 13
    s_add_u32 s42, s42, {g.L('tail')}-{g.L('pc')}
    v_lshl_add_u32 v{QA}, v{LN16}, 3, s42
    buffer_load_dword a{ADUM}, v{QA}, s[92:95], 0 offen
    s_bitcmp0_b32 s28, 0
    s_cselect_b32 s12, s{PWG}, s{PWU}
    s_cselect_b32 s13, s{PWG+1}, s{PWU+1}
    s_cmp_lt_u32 s74, 27
    s_cselect_b32 s14, {640*3456}, 0
    s_lshr_b32 s3, s28, 1
    s_lshl_b32 s42, s85, 1
    s_add_u32 s42, s42, s3
    s_mul_i32 s42, s42, {40*3456}
    s_lshl_b32 s3, s74, 7
    s_add_u32 s42, s42, s3
    v_min_u32 v{QAB}, {39*16}, v{LN16}
    v_mul_u32_u24 v{QAB}, 216, v{QAB}
    buffer_load_dword a{ADUM}, v{QAB}, s[12:15], s42 offen
    s_mul_i32 s87, s28, 14
    s_cmp_eq_u32 s28, 3
    s_cselect_b32 s87, 41, s87
    v_lshrrev_b32 v{QAB}, 2, v{LN16}
    s_lshl_b32 s3, s73, 9
    s_lshl_b32 s42, s28, 7
    s_add_u32 s3, s3, s42
    s_add_u32 s3, s3, {FW}
    v_add_u32 v{QA}, s3, v{QAB}
    s_lshl_b32 s3, s87, 2
    s_sub_u32 s3, s3, 128
    v_add_u32 v{MA}, s3, v{QAB}
    v_min_u32 v{MA}, {53*4}, v{MA}
    s_lshl_b32 s3, s73, 8
    s_add_u32 s3, s3, {FD}
    v_add_u32 v{MA}, s3, v{MA}
    v_cmp_gt_u32 vcc, 128, v{QAB}
    v_add_u32 v{DQ}, {FM + (40-48)*4}, v{QAB}
    s_mov_b32 s88, {FLG}
    v_cndmask_b32 v{QA}, v{MA}, v{QA}, vcc
    v_cmp_gt_u32 vcc, 192, v{QAB}
    v_add_u32 v{QAB}, {FM + 56*4}, v{QAB}
    s_nop 0
    v_cndmask_b32 v{QA}, v{DQ}, v{QA}, vcc
    buffer_load_dword v{MA}, v{QA}, s[16:19], s88 offen{SC1} ; t=chk
    buffer_load_dword v{DQ}, v{QAB}, s[16:19], s88 offen{SC1} ; t=chk
    s_branch {g.L("loop")}''')
    g.cut('chk')
    a.label(g.L('tail'))
    rd = [vread(db, u, 1, 31) for db in range(8) for u in range(2)]
    a('s_waitcnt lgkmcnt(0)')
    g.stamp(7)
    for l in rd[:12]: a(l)
    for e in range(n0, 32):
        r, qb, p = sm_ops(e, 1)
        a(f'v_exp_f32 v{r}, v{r}')
    for e in range(n0 - 2, 32):
        r, qb, p = sm_ops(e, 1)
        if e & 1: a(f'v_cvt_pk_bf16_f32 v{p}, v{r-1}, v{r}')
    a('WAITLG f9')
    for l in rd[12:]: a(l)
    va = []
    for e in range(n0 - 2, 32):
        r, qb, p = sm_ops(e, 1)
        va.append(f'v_add_f32 v{L0+qb}, v{L0+qb}, v{r}')
    for sw in ('v_permlane16_swap_b32', 'v_permlane32_swap_b32'):
        va += [f'v_mov_b32 v{S0+qb}, v{L0+qb}' for qb in range(4)]
        va += [f'{sw} v{L0+qb}, v{S0+qb}' for qb in range(4)]
        va += [f'v_add_f32 v{L0+qb}, v{L0+qb}, v{S0+qb}' for qb in range(4)]
    va += [f'v_rcp_f32 v{S0+8+2*qb}, v{L0+qb}' for qb in range(4)]
    va += [f'v_add_f32 v{S0}, v{L0}, v{L0+1}', f'v_add_f32 v{S0+1}, v{L0+2}, v{L0+3}', f'v_add_f32 v{S0}, v{S0}, v{S0+1}']
    va += [f'v_cmp_ngt_f32 vcc, {hex(f2u(opt.get("thr", 2.0**64)))}, v{S0}', f'v_mov_b32 v{S0+4}, 1', f'v_mov_b32 v{S0+5}, {FLAG}']
    for db in range(8):
        a(f'WAITLG f{8+db}')
        for qb in range(4):
            a(f'{MF} {Or(qb,db)}, {ar(AV+db*4,4)}, {vr(P0+16+qb*4,4)}, {Or(qb,db)}')
            for l in va[:2]: a(l)
            va = va[2:]
    assert not va
    a(f'''s_mov_b64 exec, vcc
    ds_write_b32 v{S0+5}, v{S0+4}
    s_mov_b64 exec, -1
    s_lshl_b32 s42, s30, 5
    s_add_u32 s42, s42, s29
    s_lshl_b32 s41, s42, 14
    s_add_u32 s41, s41, {OB}
    s_lshl_b32 s42, s42, 2
    s_add_u32 s42, s42, {FLG + FO}''')
    n = 0
    for B in range(4):
        for qb in range(4):
            o = O0 + (qb*8 + 2*B)*4; d = P0 + (n % 4)*4; n += 1
            for k in range(4): a(f'v_pk_mul_f32 {vr(o+2*k,2)}, {vr(o+2*k,2)}, {vr(S0+8+2*qb,2)} op_sel_hi:[1,0]')
            for k in range(4): a(f'v_cvt_pk_bf16_f32 v{d+k}, v{o+2*k}, v{o+2*k+1}')
            a(f'buffer_store_dwordx4 {vr(d,4)}, v{LN16}, s[16:19], s41 offen offset:{qb*1024}{SC1} ; t=o')
        if B < 3: a('s_add_u32 s41, s41, 4096')
    a(f'''s_waitcnt lgkmcnt(0)
    s_barrier
    ds_read_b32 v{S0+4}, v{S0+5}
    s_waitcnt lgkmcnt(0)
    v_readfirstlane_b32 s3, v{S0+4}
    s_cmp_gt_u32 s3, s38
    s_cbranch_scc1 {g.L('fallback')}''')
    g.stamp(8)
    g.cut('tail')

def fallback(g):
    a = g.a
    a.label(g.L('fallback'))
    a(f'''s_mov_b32 s38, 1
    s_mov_b32 s81, 0
    s_mov_b32 s6, {524288+1024}
    s_mov_b32 s10, {524288+1024}
    s_mov_b32 s32, 1024
    s_mov_b32 s33, 128
    s_mov_b32 s34, 0
    s_mov_b32 m0, s31
    v_mov_b32 v{VK}, v{VKB}
    s_waitcnt vmcnt(0)''')
    for qb in range(4): a(f'v_mov_b32 v{NEG+qb*4}, 0xff800000')
    g.cut('fb1')
    a.label(g.L('fbloop'))
    a('s_barrier')
    for p in range(4): a(kvdma('K', p, 0))
    a('s_waitcnt vmcnt(0)\ns_barrier')
    for half in range(2):
        for f in range(8): a(kread(f, half, 0))
        a('s_waitcnt lgkmcnt(0)')
        for f in range(8):
            kb, s = f >> 2, f & 3
            for qb in range(4):
                d = vr(S0 + qb*8 + kb*4, 4)
                a(f'{MF} {d}, {ar(AK+f*4,4)}, {ar(AQ+(qb*4+s)*4,4)}, {d if s else 0}')
        a('s_nop 7')
        for qb in range(4):
            for k in range(4): a(f'v_max3_f32 v{NEG+qb*4}, v{NEG+qb*4}, v{S0+qb*8+2*k}, v{S0+qb*8+2*k+1}')
    a(f'''s_add_u32 s32, s32, 16384
    s_add_u32 s33, s33, 16384
    s_add_u32 s34, s34, 1
    s_cmp_lt_u32 s34, 32
    s_cbranch_scc1 {g.L('fbloop')}''')
    g.cut('fb2')
    for qb in range(4): xsum(a, NEG+qb*4, NEG+qb*4+1, 'v_max_f32')
    for qb in range(4):
        a(f'v_sub_f32 v{NEG+qb*4}, 0, v{NEG+qb*4}')
        for k in range(1, 4): a(f'v_mov_b32 v{NEG+qb*4+k}, v{NEG+qb*4}')
    a('s_barrier')
    for w, T in kvafter.values():
        a(f's_mov_b32 s32, {T*16384 + 1024}\ns_mov_b32 s33, {T*16384 + 128}\ns_add_u32 m0, s31, {soff(w+str(T))}\ns_nop 0')
        for p in range(4): a(kvdma(w, p, T))
    a(f's_waitcnt vmcnt(0)\ns_barrier\ns_branch {g.L("start")}')
    g.cut('fb3')

RED = 102400
AX2 = 244
def p35(g, which):
    a = g.a; opt = g.opt; k3 = which == 3
    NKB, NS = (128, 32) if k3 else (54, 14)
    ACT, WGT = (OB, WOF) if k3 else (GB, WDF)
    NW = 12; NA = opt.get('na', 5)
    ACC = 0; VA = 80; VX = 85; VM = 86; WA = 87; RA = 90; XR_ = 92; GA = 104; CB = 124; T = 144; AR = 164
    assert AR + NA*16 <= 244
    st0 = 9 if k3 else 17
    def srdof(ks): return 20 if (not k3 and ks == NS-1) else 16
    def wld(ks):
        b = (ks % NW)*20; s = srdof(ks)
        return [f'buffer_load_dwordx4 {ar(b+4*j,4)}, v{LN16}, s[{s}:{s+3}], s{33 if j < 4 else 34} offen offset:{(j%4)*1024}{SC1} ; t=w{ks}' for j in range(5)] + ['s_add_u32 s33, s33, 5120', 's_add_u32 s34, s34, 5120']
    def ald(ks):
        b = AR + (ks % NA)*16; s = srdof(ks)
        return [f'buffer_load_dwordx4 {vr(b+4*i,4)}, v{VA+i}, s[{s}:{s+3}], s32 offen{SC1} ; t=a{ks}' for i in range(4)] + ['s_add_u32 s32, s32, 4096']
    wsetup = ['s_lshl_b32 s35, s28, 5' if k3 else 's_mov_b32 s35, s87', f's_mul_i32 s33, s73, {NKB}', 's_add_u32 s33, s33, s35', 's_mul_i32 s33, s33, 5120',
              f's_add_u32 s33, s33, {WGT}', 's_add_u32 s34, s33, 4096']
    n1 = opt.get('n1_3', 4) if k3 else opt.get('n1_5', 4)
    if k3:
        g.nl += 1; l = g.L(f'poll{g.nl}')
        a('s_mov_b32 s82, 0'); a.label(l)
        a(f'''v_min_u32 v{MA}, v{MA}, v{DQ}
        v_cmp_eq_u32 vcc, 0, v{MA}
        s_cmp_eq_u64 vcc, 0
        s_cbranch_scc1 {l}d''')
        g.cut('chk2')
        a(f'''buffer_load_dword v{MA}, v{QA}, s[16:19], s88 offen{SC1}
        buffer_load_dword v{DQ}, v{QAB}, s[16:19], s88 offen{SC1}
        s_waitcnt vmcnt(0)
        s_add_u32 s82, s82, 1
        s_cmp_lt_u32 s82, 0x40000
        s_cbranch_scc1 {l}''')
        g.cut('chk3')
        a.label(l + 'd')
        for x in wsetup: a(x)
        for ks in range(n1):
            for x in wld(ks): a(x)
        a('WAITVM o')
        g.flag(42, 0)
        g.stamp(st0)
    else:
        g.p5pre = (wsetup, sum([wld(ks) for ks in range(n1)], []))
        p4(g)
    for ks in range(n1, NW):
        for x in wld(ks): a(x)
    a(f'''s_mul_i32 s32, s72, {NKB}
    s_add_u32 s32, s32, s35
    s_lshl_b32 s32, s32, 12
    s_add_u32 s32, s32, {ACT}
    v_bfe_u32 v2, v{LN16}, 4, 4
    v_lshrrev_b32 v3, 8, v{LN16}
    v_mul_u32_u24 v{VX}, 1280, v2
    v_mad_u32_u24 v{VX}, v3, 40, v{VX}
    v_mul_u32_u24 v{VM}, 80, v3
    s_lshl_b32 s40, s72, 2
    s_add_u32 s40, s40, s28
    s_mul_i32 s41, s40, {16*1280}
    s_mul_i32 s3, s73, 160
    s_add_u32 s41, s41, s3
    s_mul_i32 s43, s73, 320
    s_add_u32 s43, s43, {MOD + (2 if k3 else 5)*2560}
    s_add_u32 s42, s43, {2*2560}
    s_mul_i32 s3, s28, 15360
    s_add_u32 s3, s3, {RED}
    v_add_u32 v{RA}, s3, v{LN16}
    v_lshlrev_b32 v91, 6, v2''')
    for i in range(4):
        a(f's_add_u32 s3, s28, {i}\ns_and_b32 s36, s3, 3\ns_lshl_b32 s3, s36, 10\nv_add_u32 v{VA+i}, s3, v{LN16}')
        if i: a(f's_mul_i32 s3, s36, 15360\ns_add_u32 s3, s3, {RED + (i-1)*5120}\nv_add_u32 v{WA+i-1}, s3, v{LN16}')
    srd(a, 4, PX if k3 else POUT, (PX if k3 else POUT) + 1, 2048*1280)
    if k3:
        a(f'''v_and_b32 v4, 7, v2
        v_lshlrev_b32 v4, 2, v4
        s_lshl_b32 s36, s72, 7
        s_lshl_b32 s3, s28, 5
        s_add_u32 s36, s36, s3
        s_add_u32 s36, s36, {FLG + FO}''')
        p4setup(g)
    else:
        srd(a, 20, PWS, PWS+1, WS_BYTES)
        a(f'''s_cmp_ge_u32 s28, 2
        s_cselect_b32 s22, 0, s22
        s_lshr_b32 s3, s87, 1
        v_min_u32 v4, 6, v2
        v_add_u32 v4, s3, v4
        v_lshlrev_b32 v4, 2, v4
        s_lshl_b32 s36, s72, 7
        s_add_u32 s36, s36, {FLG + FG}''')
    g.poll([f'buffer_load_dword v5, v4, s[16:19], s36 offen{SC1}'], [5])
    g.stamp(st0 + 1)
    for ks in range(NA):
        for x in ald(ks): a(x)
    ep = [f'buffer_load_dwordx4 {vr(GA+4*j,4)}, v{VM}, s[16:19], s43 offen offset:{16*j}{SC1} ; t=e' for j in range(5)]
    if k3:
        ep += [f'buffer_load_dwordx4 {vr(XR_,4)}, v{VX}, s[4:7], s41 offen ; t=e', f'buffer_load_dwordx4 {vr(XR_+4,4)}, v{VX}, s[4:7], s41 offen offset:16 ; t=e',
               f'buffer_load_dwordx2 {vr(XR_+8,2)}, v{VX}, s[4:7], s41 offen offset:32 ; t=e']
        ep += [f'buffer_load_dwordx4 {vr(CB+4*j,4)}, v{VM}, s[16:19], s42 offen offset:{16*j}{SC1} ; t=e' for j in range(5)]
        ep += sum([wdma4(hg) for hg in range(5)], [])
    for ks in range(NS):
        a(f'WAITVM a{ks},w{ks}')
        L = []
        if ks >= 1 and ks + NA - 1 < NS: L += ald(ks + NA - 1)
        if ks >= 1 and ks + NW - 1 < NS: L += wld(ks + NW - 1)
        late = ks + NA - 1 >= NS
        n = 0
        for j in range(5):
            for i in range(4):
                d = vr(ACC + (i*5+j)*4, 4)
                a(f'{MF} {d}, {ar((ks%NW)*20+4*j,4)}, {vr(AR+(ks%NA)*16+4*i,4)}, {d if ks else 0}')
                if n % 2 == 0:
                    for x in take(ep if late else L): a(x)
                n += 1
        assert not L
    for x in ep: a(x)
    g.stamp(st0 + 2)
    if not k3:
        for k in range(10): a(f'v_accvgpr_read_b32 v{XR_+k}, a{AX2+k}')
    else: a('s_nop 7')
    for i in range(1, 4):
        for j in range(5): a(f'ds_write_b128 v{WA+i-1}, {vr(ACC+(i*5+j)*4,4)} offset:{j*1024} ; dma=R+H5+H6+H7+V2+V3+X+XD:r{which}')
    a('s_waitcnt lgkmcnt(0)\ns_barrier')
    for i in range(3):
        for j in range(5): a(f'ds_read_b128 {vr(ACC+20+(i*5+j)*4,4)}, v{RA} offset:{i*5120+j*1024}')
    a('WAITVM e\ns_mov_b32 s3, 0xffff0000')
    for k in range(10): a(f'v_lshlrev_b32 v{T+2*k}, 16, v{XR_+k}\nv_and_b32 v{T+2*k+1}, s3, v{XR_+k}')
    for i in range(3):
        a(f'WAITLG r{i}')
        for k in range(10): a(f'v_pk_add_f32 {vr(ACC+2*k,2)}, {vr(ACC+2*k,2)}, {vr(ACC+20+20*i+2*k,2)}')
    for k in range(10): a(f'v_pk_fma_f32 {vr(ACC+2*k,2)}, {vr(ACC+2*k,2)}, {vr(GA+2*k,2)}, {vr(T+2*k,2)}')
    for k in range(10): a(f'v_cvt_pk_bf16_f32 v{XR_+k}, v{ACC+2*k}, v{ACC+2*k+1}')
    if not k3:
        a(f'''buffer_store_dwordx4 {vr(XR_,4)}, v{VX}, s[4:7], s41 offen
        buffer_store_dwordx4 {vr(XR_+4,4)}, v{VX}, s[4:7], s41 offen offset:16
        buffer_store_dwordx2 {vr(XR_+8,2)}, v{VX}, s[4:7], s41 offen offset:32''')
        g.stamp(st0 + 3)
        g.cut('p5')
        return
    for k in range(10): a(f'v_lshlrev_b32 v{T+2*k}, 16, v{XR_+k}\nv_and_b32 v{T+2*k+1}, s3, v{XR_+k}')
    for k in range(10): a(f'v_pk_mul_f32 {vr(CB+2*k,2)}, {vr(CB+2*k,2)}, {vr(T+2*k,2)}')
    for k in range(10): a(f'v_cvt_pk_bf16_f32 v{20+k}, v{CB+2*k}, v{CB+2*k+1}')
    a(f'''s_lshr_b32 s32, s73, 1
    s_mul_i32 s32, s32, 5
    s_mul_i32 s3, s72, 20
    s_add_u32 s32, s32, s3
    s_lshl_b32 s32, s32, 2
    s_add_u32 s32, s32, s28
    s_lshl_b32 s32, s32, 10
    s_add_u32 s32, s32, {YB}
    s_and_b32 s3, s73, 1
    s_lshl_b32 s33, s3, 13
    s_add_u32 s33, s33, s32
    s_add_u32 s34, s33, 4096
    s_lshl_b32 s35, s3, 3
    s_add_u32 s35, s35, s32
    s_add_u32 s35, s35, 16384
    buffer_store_dwordx4 v[20:23], v{LN16}, s[16:19], s33 offen{SC1}
    buffer_store_dwordx4 v[24:27], v{LN16}, s[16:19], s34 offen{SC1}
    buffer_store_dwordx2 v[28:29], v{LN16}, s[16:19], s35 offen{SC1}
    v_pk_add_f32 v[0:1], {vr(T,2)}, {vr(T+2,2)}''')
    for k in range(2, 10): a(f'v_pk_add_f32 v[0:1], v[0:1], {vr(T+2*k,2)}')
    a('v_add_f32 v0, v0, v1')
    xsum(a, 0, 1)
    a(f'v_mul_f32 v2, {hex(f2u(-1/80))}, v0')
    for k in range(10): a(f'v_pk_add_f32 {vr(T+2*k,2)}, {vr(T+2*k,2)}, v[2:3] op_sel_hi:[1,0]')
    a(f'v_pk_mul_f32 v[4:5], {vr(T,2)}, {vr(T,2)}')
    for k in range(1, 10): a(f'v_pk_fma_f32 v[4:5], {vr(T+2*k,2)}, {vr(T+2*k,2)}, v[4:5]')
    a('v_add_f32 v1, v4, v5')
    xsum(a, 1, 2)
    a(f'''s_lshl_b32 s36, s40, 10
    s_lshl_b32 s3, s73, 3
    s_add_u32 s36, s36, s3
    s_add_u32 s36, s36, {STAT}
    s_mov_b64 exec, 0xffff
    buffer_store_dwordx2 v[0:1], v91, s[16:19], s36 offen{SC1}
    s_mov_b64 exec, -1
    s_lshl_b32 s42, s72, 3
    s_add_u32 s42, s42, s73
    s_lshl_b32 s42, s42, 2
    s_add_u32 s42, s42, s28
    s_lshl_b32 s42, s42, 2
    s_add_u32 s42, s42, {FLG + FY}''')
    for k in range(10): a(f'v_accvgpr_write_b32 a{AX2+k}, v{XR_+k}')
    if opt.get('dbg'):
        a(f'''s_add_u32 s41, s41, {X2B}
        buffer_store_dwordx4 {vr(XR_,4)}, v{VX}, s[16:19], s41 offen
        buffer_store_dwordx4 {vr(XR_+4,4)}, v{VX}, s[16:19], s41 offen offset:16
        buffer_store_dwordx2 {vr(XR_+8,2)}, v{VX}, s[16:19], s41 offen offset:32''')
    a('s_waitcnt vmcnt(0)')
    g.flag(42, 4)
    g.stamp(st0 + 3)
    a(f's_barrier\ns_cmp_ge_u32 s74, 27\ns_cbranch_scc1 {g.L("idle4")}')
    g.cut('p3')

DW4 = 244
def p4setup(g):
    g.a(f'''v_bfe_u32 v5, v{LN16}, 5, 3
    v_and_b32 v6, 16, v{LN16}
    v_lshl_add_u32 v6, v3, 5, v6
    v_mul_u32_u24 v5, 3456, v5
    v_add_u32 v{DW4}, v5, v6
    s_lshr_b32 s3, s28, 1
    s_mul_i32 s89, s3, {5*8*3456}
    s_lshl_b32 s90, s74, 7
    s_add_u32 s89, s89, s90
    s_mul_i32 s90, s3, {5*2048}
    s_and_b32 s3, s28, 1
    s_lshl_b32 s3, s3, 10
    s_add_u32 s90, s90, s3''')
def wdma4(hg):
    L = []
    ov = '+R' if hg >= 5 else '+K0+K1+K2+K3+V0+V1+V2'
    for o in range(5):
        L += [f's_add_u32 m0, s90, {hg*20480 + o*2048}', f's_add_u32 s91, s89, {(hg*10+o)*8*3456}',
              f'buffer_load_dwordx4 v{DW4}, s[12:15], s91 offen lds']
    return L

def p4(g):
    a = g.a; opt = g.opt
    ACC = 0; UT = 128; UV = 136; MEAN = 200; RSTD = 208; BE = 216; AE = 220; VMH = 224; T = 226
    AY = 0; AW = 128; AU = 192; AMF = 208
    RD = 8; QD = 3
    for hg in range(5, 8):
        for l in wdma4(hg): a(l)
    a(f'''v_lshrrev_b32 v4, 8, v{LN16}
    v_bfe_u32 v2, v{LN16}, 4, 4
    v_and_b32 v6, 1, v2
    v_mul_u32_u24 v5, 40, v4
    v_mul_u32_u24 v6, 1280, v6
    v_sub_u32 v5, v5, v6
    v_add_u32 v{VMH}, 1280, v5
    s_mul_i32 s32, s30, {20*4096}
    s_add_u32 s32, s32, {YB}
    s_mov_b32 s37, {MODH + 3*1280}
    v_lshlrev_b32 v3, 6, v2
    v_lshl_add_u32 v3, v4, 4, v3
    s_lshl_b32 s38, s30, 12
    s_add_u32 s38, s38, {STAT}
    s_mov_b32 s39, {hex(f2u(1/80))}
    s_mov_b32 s40, {hex(f2u(1/640))}
    v_mov_b32 v{T}, {hex(f2u(1e-5))}
    v_bfe_u32 v7, v{LN16}, 2, 7
    s_lshl_b32 s36, s30, 7
    s_add_u32 s36, s36, {FLG + FY}''')
    for p in range(2):
        a(f'''v_mad_u32_u24 v5, v4, 5, {p}
        v_lshrrev_b32 v6, 1, v5
        v_and_b32 v5, 1, v5
        v_lshlrev_b32 v5, 7, v5
        v_lshl_add_u32 v5, v6, 11, v5
        v_lshl_add_u32 v{BE+p}, v2, 3, v5
        s_lshl_b32 s3, s28, 9
        v_add_u32 v{BE+2+p}, s3, v{BE+p}''')
    for p in range(4): a(f'v_mov_b32 v{AE+p}, v{BE+p}')
    def yld(ks):
        m, b = divmod(ks, 5)
        L = [f'buffer_load_dwordx4 {ar(AY+(ks%RD)*16+qb*4,4)}, v{LN16}, s[16:19], s32 offen offset:{qb*1024}{SC1} ; t=y{ks}' for qb in range(4)]
        r = AMF + (ks % RD)*4
        if b < 4: L.append(f'buffer_load_dwordx4 {ar(r,4)}, v{VMH}, s[16:19], s37 offen offset:{320*m + 160*(b>>1) + 16*(b&1)}{SC1} ; t=y{ks}')
        else: L += [f'buffer_load_dwordx2 {ar(r+2*p,2)}, v{VMH}, s[16:19], s37 offen offset:{320*m + 160*p + 32}{SC1} ; t=y{ks}' for p in range(2)]
        return L + ['s_add_u32 s32, s32, 4096']
    def toff(ks, v):
        m, b = divmod(ks, 5)
        par, t = ((b >> 1), 2*(b & 1) + v) if b < 4 else (v, 4)
        return t & 1, par*20480 + (t >> 1)*2048, 2*m + par
    def wread(G):
        ks, nt = G >> 3, G & 7; L = []
        for v in range(2):
            p, off, hg = toff(ks, v)
            L.append(f'ds_read_b64_tr_b16 {ar(AW+(G%16)*4+2*v,2)}, v{AE+p} offset:{off + nt*256}')
        return L
    def uread(ks, i):
        L = []
        for v in range(2):
            p, off, hg = toff(ks, v)
            L.append(f'ds_read_b64_tr_b16 {ar(AU+i*4+2*v,2)}, v{AE+2+p} offset:{off + i*256}')
        return L
    g.poll([f'buffer_load_dword v5, v7, s[16:19], s36 offen{SC1}'], [5])
    g.stamp(13)
    for l in yld(0) + yld(1) + yld(2): a(l)
    for qb in range(4): a(f'buffer_load_dwordx4 {vr(UV+4*qb,4)}, v3, s[16:19], s38 offen offset:{qb*1024}{SC1} ; t=st')
    for l in yld(3) + yld(4) + yld(5) + yld(6): a(l)
    s = Asm()
    s('WAITVM st')
    for qb in range(4): s(f'v_add_f32 v{MEAN+2*qb}, v{UV+4*qb}, v{UV+4*qb+2}')
    def xs4(base):
        for sw in ('v_permlane16_swap_b32', 'v_permlane32_swap_b32'):
            for qb in range(4): s(f'v_mov_b32 v{base+2*qb+1}, v{base+2*qb}')
            for qb in range(4): s(f'{sw} v{base+2*qb}, v{base+2*qb+1}')
            for qb in range(4): s(f'v_add_f32 v{base+2*qb}, v{base+2*qb}, v{base+2*qb+1}')
    xs4(MEAN)
    for qb in range(4): s(f'v_mul_f32 v{MEAN+2*qb}, {hex(f2u(-1/640))}, v{MEAN+2*qb}')
    for qb in range(4):
        u = UV + 4*qb
        s(f'''v_fma_f32 v{u}, v{u}, s39, v{MEAN+2*qb}
        v_fma_f32 v{u+2}, v{u+2}, s39, v{MEAN+2*qb}
        v_add_f32 v{RSTD+2*qb}, v{u+1}, v{u+3}
        v_mul_f32 v{u}, v{u}, v{u}
        v_fmac_f32 v{u}, v{u+2}, v{u+2}
        v_fmac_f32 v{RSTD+2*qb}, {hex(f2u(80.0))}, v{u}''')
    xs4(RSTD)
    for qb in range(4): s(f'v_fma_f32 v{RSTD+2*qb}, v{RSTD+2*qb}, s40, v{T}')
    for qb in range(4): s(f'v_rsq_f32 v{RSTD+2*qb}, v{RSTD+2*qb}')
    sv = [x.strip() for x in s.lines]
    a('s_barrier')
    for G in range(QD):
        for l in wread(G): a(l)
    a('WAITVM y0\nWAITLG w0')
    g.stamp(14)
    for ks in range(20):
        m, b = divmod(ks, 5)
        mem = yld(ks + RD - 1) if ks + RD - 1 < 20 else []
        for nt in range(8):
            G = ks*8 + nt
            M = [f'{MF} {vr(ACC+(qb*8+nt)*4,4)}, {ar(AW+(G%16)*4,4)}, {ar(AY+(ks%RD)*16+qb*4,4)}, {vr(ACC+(qb*8+nt)*4,4) if ks else 0}' for qb in range(4)]
            X = []
            R = wread(G + QD) if G + QD < 160 else []
            if (G + QD + 1) % 40 == 0 and G + QD + 1 < 160: X = [f'v_add_u32 v{AE+p}, {((G+QD+1)//40)*40960}, v{BE+p}' for p in range(2)]
            if b == 4 and nt == 7 and m < 3: X += [f'v_add_u32 v{AE+2+p}, {(m+1)*40960}, v{BE+2+p}' for p in range(2)]
            U = uread(ks, nt) if nt < 2 else []
            m1 = take(mem) if nt >= 1 else []
            MU = []
            if nt >= 6:
                i = nt - 6; d = vr(UT + 4*i, 4)
                MU = [f'WAITLG u{ks}_{i}', f'{MF} {d}, {ar(AU+4*i,4)}, {ar(AMF+(ks%RD)*4,4)}, {d if ks else 0}']
            W = [f'WAITLG w{G+1}'] if G + 1 < 160 else []
            if nt == 7 and ks < 19: W.append(f'WAITVM y{ks+1}')
            if ks >= 4 and not X: X = sv[:2]; sv = sv[2:]
            for l in [M[0]] + R + [M[1]] + U + [M[2]] + m1 + [M[3]] + X + MU + W: a(l)
        for l in mem: a(l)
    assert not sv
    g.stamp(15)
    wsetup, wpre = g.p5pre
    a(f'''v_bfe_u32 v{T}, v{LN16}, 4, 1
    v_lshrrev_b32 v{T+1}, 8, v{LN16}
    v_lshlrev_b32 v{T+1}, 4, v{T+1}
    v_lshl_add_u32 v{T}, v{T}, 9, v{T+1}
    s_lshl_b32 s3, s28, 7
    v_add_u32 v{T}, s3, v{T}
    s_mul_i32 s41, s30, 54
    s_lshl_b32 s3, s74, 1
    s_add_u32 s41, s41, s3
    s_lshl_b32 s41, s41, 12
    s_add_u32 s41, s41, {GB}
    s_lshl_b32 s42, s30, 5
    s_add_u32 s42, s42, s74
    s_lshl_b32 s42, s42, 2
    s_add_u32 s42, s42, {FLG + FG}
    s_barrier
    ds_write_b128 v{T}, {vr(UT,4)} ; dma=H0:ut
    ds_write_b128 v{T}, {vr(UT+4,4)} offset:64 ; dma=H0:ut''')
    for x in wsetup + wpre: a(x)
    a('s_waitcnt lgkmcnt(0)\ns_barrier')
    order = [0, 4, 1, 5, 2, 6, 3, 7]
    for n, nt in enumerate(order):
        if n == 7: a('WAITLG ut0')
        for r in range(2): a(f'ds_read_b128 {vr(UV+(nt*2+r)*4,4)}, v{T+1} offset:{r*512+nt*64}')
    n = 0
    for B in range(2):
        a(f'WAITLG ut{2*B+5}')
        for qb in range(4):
            d = T + 2 + (n % 4)*4; n += 1
            for ft in (2*B, 2*B+1):
                for mat in range(2):
                    nt = mat*4 + ft
                    for k in range(2):
                        c = vr(ACC + (qb*8+nt)*4 + 2*k, 2)
                        a(f'v_pk_fma_f32 {c}, {vr(UV+nt*8+2*k,2)}, {vr(MEAN+2*qb,2)}, {c} op_sel_hi:[1,0,1]')
                for mat in range(2):
                    nt = mat*4 + ft
                    for k in range(2):
                        c = vr(ACC + (qb*8+nt)*4 + 2*k, 2)
                        a(f'v_pk_fma_f32 {c}, {c}, {vr(RSTD+2*qb,2)}, {vr(UV+nt*8+4+2*k,2)} op_sel_hi:[1,0,1]')
                gg = ACC + (qb*8+ft)*4; u = gg + 16
                for k in range(4): a(f'v_max_f32 v{gg+k}, 0, v{gg+k}')
                for k in range(2): a(f'v_pk_mul_f32 {vr(gg+2*k,2)}, {vr(gg+2*k,2)}, {vr(u+2*k,2)}')
                for k in range(2): a(f'v_cvt_pk_bf16_f32 v{d+2*(ft&1)+k}, v{gg+2*k}, v{gg+2*k+1}')
            a(f'buffer_store_dwordx4 {vr(d,4)}, v{LN16}, s[16:19], s41 offen offset:{qb*1024}{SC1}')
        if B == 0: a('s_add_u32 s41, s41, 4096')
    g.stamp(16)
    a('s_waitcnt vmcnt(0)')
    g.flag(42, 4)
    a(f's_branch {g.L("p5")}')
    g.cut('p4')
    a.label(g.L('idle4'))
    for x in wsetup + wpre: a(x)
    g.cut('idle4')
    a.label(g.L('p5'))
    g.stamp(17)

def gen_mega(name, opt={}):
    g = Gen(name, opt); a = g.a
    p0(g); p2(g); p35(g, 3); p35(g, 5)
    if opt.get('stamp'):
        a('s_waitcnt vmcnt(0)')
        g.stamp(21)
        a(f'''s_lshl_b32 s3, s2, 2
        s_add_u32 s3, s3, s28
        s_lshl_b32 s3, s3, 8
        s_add_u32 s3, s3, {STAMP}
        v_lshrrev_b32 v0, 2, v{LN16}
        buffer_store_dword v{STV}, v0, s[16:19], s3 offen''')
    a('s_endpgm')
    g.cut('fin')
    fallback(g)
    a.label(g.L('end')); a('s_endpgm'); g.cut('end')
    S = g.seg
    for role in ('gemv', 'ln'):
        st = dict(vm=[], lg=[]); resolve(S['p0'], st); S[role] = resolve(S[role], st)
    st = dict(vm=[], lg=[])
    for n in ('p1wait', 'qproj', 'qcvt', 'st1', 'st2', 'st3'): S[n] = resolve(S[n], st)
    steps = [resolve(step(j, opt), st) for j in range(63)]
    for j in range(63): assert strip_comments(steps[j]) == strip_comments(steps[2 + (j & 1)]), j
    S['LOOP'] = ['.p2align 6', g.L('loop') + ':'] + steps[2] + [f'    s_cbranch_scc1 {g.L("tail")}'] + steps[3] + [f'    s_cbranch_scc0 {g.L("loop")}']
    for n in ('tail', 'chk2', 'p3', 'p4'): S[n] = resolve(S[n], st)
    S['p5'] = resolve(S['p5'], dict(vm=[], lg=[]))
    lines = sum([S[n] for n in g.order], [])
    def loop(extra):
        o = []
        for j in range(63):
            o += steps[j]
            if j & 1: o += sum([S[x] for x in extra.get((j+1)//2, [])], [])
        return o
    e1 = {TS_SIDE: ['spec', 'side'], TS_SIG: ['spec', 'sig'], TS_CHK: ['spec', 'chk']}
    e2 = {TS_SIDE: ['spec', 'side', 'sidewd'], TS_SIG: ['spec', 'sig', 'sigwd'], TS_CHK: ['spec', 'chk']}
    c = lambda *n: sum([S[x] for x in n], [])
    tr = [c('p0', 'ln', 'go', 'flag1', 'p1wait', 'qproj', 'qcvt', 'st1', 'st2', 'st3') + loop(e1) + c('tail', 'chk2', 'p3', 'p4', 'p5', 'fin'),
          c('p0', 'gemv', 'gemvw0', 'go', 'flag1', 'p1wait', 'qproj', 'wd1', 'qcvt', 'st1', 'st2', 'st3') + loop(e2) + c('tail', 'fb1', 'fb2', 'fb2', 'fb3', 'st1', 'st3') + loop({}) + c('tail', 'chk2', 'chk3', 'chk2', 'p3', 'idle4', 'p5', 'fin'),
          c('p0', 'zero', 'idle', 'go', 'p1wait', 'qproj'), c('p0', 'gemv', 'go', 'p1wait', 'qproj')]
    return dict(name=name, lines=lines, traces=tr, vgpr=512, accum=256, grid=256, block=256, lds=163840)
```

```python
import sys
from gen import *
from mega import gen_mega
KN = 'adaLN_cond__mha_block_cached__glu_gated_reglu__prompt_kernel'
def final(path, opt={}):
    ref = open('adaLN_cond__mha_block_cached__glu_gated_reglu__prompt.s.ref').read()
    hdr = ''.join(l + '\n' for l in ref.split('\n') if l.startswith(';   offset') or l.startswith('; Kernarg'))
    k = gen_mega('m', opt); k['name'] = KN
    ok = assemble([k], path, hdr)
    s = open(path).read().replace(f'; @launch kernel={KN} ', '; @launch ')
    open(path, 'w').write(s)
    return ok
if __name__ == '__main__':
    V = eval(sys.argv[1]) if len(sys.argv) > 1 else dict(base={})
    assemble([gen_mega(f'{n}_kernel', dict(o, stamp=1, dbg=1)) for n, o in V.items()], 'm.s')
    final('mfinal.s', list(V.values())[0])
```
